```python
import torch

def _softmax(x, axis=-1):
    return torch.softmax(x, dim=axis)
def _gelu(x):
    return torch.nn.functional.gelu(x, approximate="tanh")
def _silu(x):
    return torch.nn.functional.silu(x)
def _sigmoid(x):
    return torch.sigmoid(x)
def _layernorm(x, axis=-1, eps=1e-5):
    m = x.mean(dim=axis, keepdim=True)
    v = x.var(dim=axis, keepdim=True, unbiased=False)
    return (x - m) / torch.sqrt(v + eps)
def _scatter_add(tgt, idx, src, axis=0):
    return tgt.clone().index_add_(axis, idx, src)
def _segment_sum(src, seg, n):
    out = torch.zeros((n,) + src.shape[1:], dtype=src.dtype)
    return out.index_add_(0, seg, src)
def _pad(x, pw):
    flat = tuple(v for pair in reversed(pw) for v in pair)
    return torch.nn.functional.pad(x, flat)

kernel_name = 'standalone__gqa_softmax__near_ridge'

def setup_inputs():

    _w = (lambda a: (lambda t: t.to(torch.bfloat16) if t.is_floating_point() else t)(torch.as_tensor(a)))
    B, Hq, Hkv, Sq, Sk, D = 8, 32, 8, 96, 2048, 128
    return {
        "q": _w((lambda *s: torch.randn(*s, dtype=torch.bfloat16) * 0.8)(B, Hq, Sq, D)),
        "k": _w((lambda *s: torch.randn(*s, dtype=torch.bfloat16) * 0.8)(B, Hkv, Sk, D)),
        "v": _w((lambda *s: torch.randn(*s, dtype=torch.bfloat16) * 0.05)(B, Hkv, Sk, D)),
    }

def reference(q, k, v):
    B, Hq, Sq, D = q.shape
    Hkv = k.shape[1]
    rep = Hq // Hkv
    k = (lambda x, n, axis: torch.repeat_interleave(x, n, dim=axis))(k, rep, axis=1)
    v = (lambda x, n, axis: torch.repeat_interleave(x, n, dim=axis))(v, rep, axis=1)
    scale = D ** -0.5
    scores = torch.einsum("bhqd,bhkd->bhqk", q, k) * scale
    p = _softmax(scores, axis=-1)
    return torch.einsum("bhqk,bhkd->bhqd", p, v)
```

```python
import subprocess, sys, os, re
sys.path.insert(0, "cdna_kernels")
KN = "standalone__gqa_softmax__near_ridge_kernel"
HEADER = """; Kernarg layout for this problem (48 bytes, ptrs only, base s[0:1]):
"""
def wrap(body, grid, block, lds, nvgpr=512, accum=256, nsgpr=96, extra_comment=""):
    return f"""{HEADER}{extra_comment}; @launch grid=({grid},1,1) block=({block},1,1) lds={lds}
.amdgcn_target "amdgcn-amd-amdhsa--gfx950"
.text
.globl {KN}
.p2align 8
.type {KN},@function
{KN}:
{body}
s_endpgm
.section .rodata,"a"
.p2align 6
.amdhsa_kernel {KN}
  .amdhsa_next_free_vgpr {nvgpr}
  .amdhsa_next_free_sgpr {nsgpr}
  .amdhsa_accum_offset {accum}
  .amdhsa_group_segment_fixed_size 0
  .amdhsa_kernarg_size 48
  .amdhsa_user_sgpr_count 2
  .amdhsa_user_sgpr_kernarg_segment_ptr 1
  .amdhsa_system_sgpr_workgroup_id_x 1
  .amdhsa_float_denorm_mode_32 3
.end_amdhsa_kernel
"""
def build(src, name, outdir="out", check=True):
    from cdna_launch import with_harness_metadata, address_register_problem, parse_launch_directive
    os.makedirs(outdir, exist_ok=True)
    open(f"{outdir}/{name}.s", "w").write(src)
    h = with_harness_metadata(src, KN, 6, launch_lists=True)
    open(f"/tmp/{name}.harness.s", "w").write(h)
    r = subprocess.run(["clang", "-x", "assembler", "-target", "amdgcn-amd-amdhsa", "-mcpu=gfx950",
                        f"/tmp/{name}.harness.s", "-o", f"{outdir}/{name}.co"], capture_output=True, text=True)
    if r.returncode != 0:
        print(r.stderr[:500]); raise SystemExit(1)
    if check:
        p = address_register_problem(f"{outdir}/{name}.co", KN)
        if p: print(p); raise SystemExit(1)
    g, b, lds = parse_launch_directive(src)
    return f"dev/out/{name}.co:{KN}:{g[0]}:{b[0]}:{lds}"

def stamp_start():
    return """
    s_memrealtime s[80:81]
    s_memtime s[84:85]
"""
def stamp_mid(i):
    return f"    s_memtime s[{84+2*i}:{85+2*i}]\n"
def stamp_end(waves_per_wg, vtmp=0, wave_sgpr=None):
    t = vtmp
    s = f"""
    s_memtime s[86:87]
    s_memrealtime s[82:83]
    s_load_dwordx2 s[76:77], s[0:1], 40
    s_waitcnt lgkmcnt(0)
    s_mov_b32 s78, 0x10000000
    s_mov_b32 s79, 0x00020000
    s_mul_i32 s75, s2, {waves_per_wg}
    s_add_u32 s75, s75, s{wave_sgpr}
    s_lshl_b32 s75, s75, 6
    v_mov_b32 v{t}, 0
"""
    for j in range(16):
        s += f"    v_mov_b32 v{t+1}, s{80+j}\n    s_nop 1\n    buffer_store_dword v{t+1}, v{t}, s[76:79], s75 offen offset:{4*j}\n    s_nop 1\n"
    s += "    s_waitcnt vmcnt(0)\n"
    return s

def probe_end(kind):
    s = """
    s_memtime s[86:87]
    s_memrealtime s[82:83]
    s_waitcnt lgkmcnt(0)
"""
    s += {'base': "s_mov_b32 s75, 0\n",
          'pro': "s_sub_u32 s75, s88, s80\ns_lshl_b32 s75, s75, 2\n",
          'loop': "s_sub_u32 s75, s90, s80\n",
          'all': "s_sub_u32 s75, s82, s80\n",
          'cyc': "s_sub_u32 s75, s86, s84\ns_lshr_b32 s75, s75, 3\n"}[kind]
    s += """
    s_add_u32 s75, s75, 6000
    s_min_u32 s75, s75, 40000
L_probe:
    s_memrealtime s[82:83]
    s_waitcnt lgkmcnt(0)
    s_sub_u32 s76, s82, s80
    s_cmp_lt_u32 s76, s75
    s_cbranch_scc1 L_probe
"""
    return s

def tl_issue(): return "s_memtime s[68:69]\ns_memrealtime s[70:71]\n"
def tl_save(vt, idx):
    if isinstance(idx, int): return f"v_writelane_b32 v{vt}, s68, {idx}\nv_writelane_b32 v{vt}, s70, {idx+32}\n"
    return f"s_mov_b32 s69, m0\ns_add_u32 m0, {idx}, 0\ns_nop 0\nv_writelane_b32 v{vt}, s68, m0\ns_add_u32 m0, {idx}, 32\ns_nop 0\nv_writelane_b32 v{vt}, s70, m0\ns_mov_b32 m0, s69\n"
def tl_store(vt, vtmp):
    return f"""
    s_lshl_b32 s75, s75, 2
    s_add_u32 s75, s75, 0x100000
    v_mbcnt_lo_u32_b32 v{vtmp}, -1, 0
    v_mbcnt_hi_u32_b32 v{vtmp}, -1, v{vtmp}
    v_lshlrev_b32 v{vtmp}, 2, v{vtmp}
    buffer_store_dword v{vt}, v{vtmp}, s[76:79], s75 offen
    s_waitcnt vmcnt(0)
"""
```

```python
import struct
def f2u(x): return struct.unpack('<I', struct.pack('<f', x))[0]
class G:
    def __init__(s): s.L = []
    def e(s, text, **meta): s.L.append((text, meta))
    def raw(s, text):
        for l in text.strip('\n').split('\n'):
            if l.strip(): s.L.append((l.strip(), {}))
    def waitvm(s, tag): s.L.append(('WAIT', {'waitvm': tag}))
    def waitlg(s, tag): s.L.append(('WAIT', {'waitlg': tag}))
    def ext(s, o): s.L += o.L
def resolve(trace):
    vm, lg, out = [], [], []
    for text, m in trace:
        r = None
        if 'vm' in m: vm.append(m['vm'])
        if 'lg' in m: lg.append(m['lg'])
        if 'waitvm' in m:
            tags = m['waitvm'] if isinstance(m['waitvm'], list) else [m['waitvm']]
            idx = [i for i, x in enumerate(vm) if x in tags]
            assert idx, tags
            r = ('vmcnt', min(63, len(vm) - 1 - idx[-1]))
        if 'waitlg' in m:
            tags = m['waitlg'] if isinstance(m['waitlg'], list) else [m['waitlg']]
            idx = [i for i, x in enumerate(lg) if x in tags]
            assert idx, tags
            r = ('lgkmcnt', min(15, len(lg) - 1 - idx[-1]))
        out.append(r)
    return out
def emit(seg, rs): return [f"s_waitcnt {r[0]}({r[1]})" if t == 'WAIT' else t for (t, m), r in zip(seg, rs)]
def vr(r, n): return f"v[{r}:{r+n-1}]"
def ar(r, n): return f"a[{r}:{r+n-1}]"
def cost(t):
    if t.startswith(('v_exp', 'v_rcp', 'v_permlane', 'buffer_load')): return 8
    if t.endswith(':') or t.startswith('.'): return 0
    return 4
def predict(lines):
    tot = 0; cur = None; valu = False
    for l in lines:
        if l.startswith('v_mfma'):
            if cur is not None: tot += max(16, cur)
            cur = 8; valu = False
        elif cur is not None:
            cur += cost(l)
            if l.startswith(('ds_', 'buffer_')) and valu: cur += 8
            valu = l.startswith('v_')
    return tot + max(16, cur)
def order_tables(blocks):
    nxt = 0; base = {}
    for sz in (4, 2, 1):
        for i, b_ in enumerate(blocks):
            if b_ == sz: base[i] = nxt; nxt += sz
    T_ = M_ = 0; st = 0
    for i, b_ in enumerate(blocks):
        for k in range(b_):
            T_ |= (base[i] + k) << (4*st); M_ |= (b_ - 1) << (4*st); st += 1
    assert st == 16
    return T_, M_
import re, hazard
def readiness(seg, lines, name=''):
    vm, lg = [], []
    bad = 0
    for (t0, m), l in zip(seg, lines):
        t = l.split(';')[0].strip()
        if not t or t.endswith(':') or t.startswith('.'): continue
        if t.startswith('s_waitcnt'):
            a = re.search(r'vmcnt\((\d+)\)', t); b = re.search(r'lgkmcnt\((\d+)\)', t)
            if a: n = int(a.group(1)); vm = vm[len(vm)-n:] if n < len(vm) and n else ([] if n == 0 else vm)
            if b:
                n = int(b.group(1))
                if any(x[4].startswith('s_') for x in lg) and n: pass
                else: lg = lg[len(lg)-n:] if n < len(lg) and n else ([] if n == 0 else lg)
            continue
        I = hazard.I(t)
        rd, wr = set(m.get('rd', ())), set(m.get('wr', ()))
        for q, nm in ((vm, 'vm'), (lg, 'lg')):
            for (pw, pr, prd, pwr, pt) in q:
                why = None
                if pw & (I.r | I.w) and not (nm == 'lg' and I.kind == 'ds' and not pw & I.r): why = 'reg not ready'
                if pwr & (rd | wr) and not (nm == 'lg' and I.kind == 'ds') and not (nm == 'vm' and I.kind == 'vmem'): why = 'lds write pending'
                if prd & wr and not (nm == 'lg' and I.kind == 'ds'): why = 'lds read pending'
                if t.startswith('s_barrier') and (pwr & set(m.get('pub', ()))): why = 'unpublished at barrier'
                if why:
                    bad += 1; print(f"READY[{name}] {why}\n    {pt}\n    {t}")
        if I.kind == 'vmem': vm.append((I.w, set(), rd, wr, t))
        if I.kind == 'ds': lg.append((I.w, set(), rd, wr, t))
        if t.startswith(('s_load', 's_memtime', 's_memrealtime')): lg.append((I.w, set(), set(), set(), t))
    return bad
```

```python
import sys, re
from asmlib import *
from gcore import *
import hazard
SCALE = 1.4426950408889634 / (128 ** 0.5)
A_Q, A_K, A_V, A_LS, A_ONE = 0, 96, 160, 224, 248
L = 1
V_AW, V_RA, V_LW, V_LR, V_OA, V_G = 2, 3, 6, 7, 8, 9
V_R = 10
V_KDMA = 12
V_VDMA = 16
V_KRD = 20
V_VRD = 24
V_O = 32
V_S = 224
V_P = 240
T = V_S
S_Q, S_K, S_V, S_O = 8, 12, 16, 20
S_OFF, S_O0, S_OL = 24, 28, 32
S_M0 = 56
S_C = 36
S_IT = 38
S_W = 74
SPARE = 131072
LZONE = SPARE + 24576
MZONE = SPARE
MF = "v_mfma_f32_16x16x32_bf16"
NUS = [2, 3, 4, 5, 6, 7, 0, 1]
PER = 34
def oreg(b, nu): return V_O + (b*8+nu)*4
def qreg(b, ks): return ar(A_Q + (b*4+ks)*4, 4)
def kreg(kb, ks): return ar(A_K + (kb*4+ks)*4, 4)
def vreg(nu, u): return A_V + (nu*2+u)*4

class Slots:
    def __init__(s, n, wrap=False):
        s.n = n; s.wrap = wrap; s.occ = [0]*n
        s.mem = [[] for _ in range(n)]; s.val = [[] for _ in range(n)]; s.post = [[] for _ in range(n)]
    def put(s, cls, item, c, at):
        at = at % s.n if s.wrap else min(at, s.n - 1)
        getattr(s, cls)[at].append(item); s.occ[at] += c
    def place(s, cls, item, c, lo, hi, cap=8):
        ix = (lambda x: x % s.n) if s.wrap else (lambda x: min(x, s.n - 1))
        best = None
        for x in range(lo, hi + 1):
            if s.occ[ix(x)] + c <= cap: best = x; break
        if best is None: best = min(range(lo, hi + 1), key=lambda x: (s.occ[ix(x)], x))
        s.put(cls, item, c, best)
        return best

def gen(kflag='', vflag='', qflag='', oflag='', stamps=False, thresh=2.0**40, skip='', mode='lag', cls='g3', vperm=(0, 1, 2, 3),
        dma0=3, dmastep=4, vrd0=0, verbose=False, tline=False, pre='k0 q k1', mid='k2 k3', post='v0 v1', lag0=5, step0=4, cap7=12,
        mode0='own', force_fb=False, vstart=0, wx=False, tog=0, trans=False, late3=False, pst=False, gsl=(36, 84, 138, 186), gap0=(0, 0), qsplit=False, ord0=None, wstep7=2, rstep7=1, x7='', nflag=None, il=False, gx=False, one1=False, nwt=6, oflag2='', bar7=8, rdw7=8, align=6):
    TS = 16 if il else 14
    US = 10 if trans else 12
    T0 = [None]
    def m0(g, grp): g.e(f"s_mov_b32 m0, s{S_M0 + grp}")
    def dma(g, kv, t, p, j, so, kflag=kflag, vflag=vflag):
        if nflag is not None and (p == 3 or so == S_O0 or g is T0[0]): kflag = vflag = nflag
        if kv == 'K': g.e(f"buffer_load_dwordx4 v{V_KDMA+j}, s[{S_K}:{S_K+3}], s{so+p} offen offset:{j*1024} {kflag} lds", vm=('K', t, p), wr={('K', p)})
        else: g.e(f"buffer_load_dwordx4 v{V_VDMA+(j if trans else j%2)}, s[{S_V}:{S_V+3}], s{so+p} offen offset:{j*1024} {vflag} lds", vm=('V', t, p), wr={('V', p)})
    def rd_k(g, t, f):
        kb, ks = f//4, f % 4
        g.e(f"ds_read_b128 {kreg(kb,ks)}, v{V_KRD+ks} offset:{kb*4096}", lg=('K', t, f), rd={('K', kb)})
    def rd_v(g, t, x):
        f, e2 = x//2, x % 2
        nu, u = NUS[f//2], f % 2
        g.e(f"ds_read_b64_tr_b16 {ar(vreg(nu,u)+e2*2,2)}, v{V_VRD+nu} offset:{(2*u+e2)*4096}", lg=('V', t, f), rd={('V', 2*u+e2)})
    def mf_qk(g, b, f):
        kb, ks = f//4, f % 4
        d = vr(V_S + kb*4, 4)
        g.e(f"{MF} {d}, {kreg(kb,ks)}, {qreg(b,ks)}, {d if ks else 0}")
    def mf_pv(g, b, s, pr, first=False):
        u = s % 2
        if s < 2: o, a_ = ar(A_LS + b*4, 4), ar(A_ONE, 4)
        else: nu = NUS[s//2 - 1]; o, a_ = vr(oreg(b, nu), 4), ar(vreg(nu, u), 4)
        g.e(f"{MF} {o}, {a_}, {vr(pr + u*4, 4)}, {0 if first and u == 0 else o}")
    def sm_exp(g, i): g.e(f"v_exp_f32 v{V_S+i}, v{V_S+i}")
    def sm_cvt(g, pr, k): g.e(f"v_cvt_pk_bf16_f32 v{pr+k}, v{V_S+2*k}, v{V_S+2*k+1}")
    def preg(b): return V_P + (b % 2)*8
    TB = 5 if pst else 0
    def TL(g, idx):
        idx += TB
        if tline and idx >= 0: g.raw(tl_issue()); g.e("s_waitcnt lgkmcnt(0)"); g.raw(tl_save(0, idx))
    def addr_dma(g):
        g.raw(f"""
v_lshrrev_b32 v{T}, 4, v{L}              ; g
v_and_b32 v{T+1}, 15, v{L}               ; i
v_xor_b32 v{T+2}, v{T+1}, v{T}           ; i ^ g
v_lshlrev_b32 v{T+3}, 8, v{T}            ; g*256
v_lshl_add_u32 v{V_KDMA}, v{T+2}, 4, v{T+3}
""")
        for j in range(1, 4): g.e(f"v_xor_b32 v{V_KDMA+j}, {j<<6}, v{V_KDMA}")
        g.raw(f"""
v_lshlrev_b32 v{T+5}, 8, v{T+1}
v_lshl_add_u32 v{T+5}, v{T+2}, 4, v{T+5}
v_add_u32 v{V_KRD}, s48, v{T+5}
v_lshlrev_b32 v{T+2}, 1, v{T}
v_xor_b32 v{T+2}, v{T+1}, v{T+2}         ; i ^ (g<<1)
v_lshl_add_u32 v{V_VDMA}, v{T+2}, 4, v{T+3}
v_xor_b32 v{V_VDMA+1}, 0x80, v{V_VDMA}
""")
        for ks in range(1, 4): g.e(f"v_xor_b32 v{V_KRD+ks}, {ks<<6}, v{V_KRD}")
        if trans:
            for j in range(1, 4): g.e(f"v_add_u32 v{V_KDMA+j}, {j*3072}, v{V_KDMA+j}")
            for j in (3, 2, 1): g.e(f"v_add_u32 v{V_VDMA+j}, {j*3072}, v{V_VDMA+j%2}")
    p = G()
    p.e("s_cmp_ge_u32 s2, 256")
    p.e("s_cbranch_scc1 L_end")
    if stamps: p.raw(stamp_start())
    p.raw(f"""
s_load_dwordx4 s[4:7], s[0:1], 0
s_load_dwordx4 s[40:43], s[0:1], 16
v_lshrrev_b32 v{T}, 6, v0
v_and_b32 v{L}, 63, v0
v_readfirstlane_b32 s{S_W}, v{T}
s_and_b32 s44, s2, 7
s_lshr_b32 s45, s2, 3
s_lshl_b32 s44, s44, 5
s_add_u32 s44, s44, s45
s_lshr_b32 s53, s44, 2           ; group
s_mul_i32 s46, s44, 24576
s_lshl_b32 s45, s53, 19
s_lshl_b32 s47, s{S_W}, {14 if il else 17}
s_add_u32 s45, s45, s47
s_lshl_b32 s48, s{S_W}, 15
s_lshl_b32 s49, s{S_W}, 6
s_lshl_b32 s50, s{S_W}, 10
s_and_b32 s52, s44, 3
{f"s_xor_b32 s52, s52, s{S_W}" if wx else ""}
s_lshl_b32 s52, s52, {US}          ; own unit
""")
    for q in range(4):
        if mode0 == 'own': p.e(f"s_xor_b32 s{S_O0+q}, s52, {q<<US}")
        elif gx:
            if q == 0: p.e("s_and_b32 s51, s53, 3"); p.e(f"s_lshl_b32 s51, s51, {US}")
            p.e(f"s_xor_b32 s{S_O0+q}, s51, {q<<US}")
        else: p.e(f"s_mov_b32 s{S_O0+q}, {q<<US}")
    for i in range(8): p.e(f"s_add_u32 s{S_M0+i}, s48, {i*4096}")
    addr_dma(p)
    p.raw(f"""
v_xor_b32 v{T+4}, s49, v{V_KDMA}
v_add_u32 v{T+4}, s50, v{T+4}
s_mov_b32 s{S_Q+2}, 24576
s_mov_b32 s{S_Q+3}, 0x20000
s_mov_b32 s{S_K+2}, {0x74000 if il else 0x20000}
s_mov_b32 s{S_K+3}, 0x20000
s_mov_b32 s{S_V+2}, {0x74000 if il else 0x20000}
s_mov_b32 s{S_V+3}, 0x20000
s_mov_b32 s{S_O+2}, 24576
s_mov_b32 s{S_O+3}, 0x20000
s_waitcnt lgkmcnt(0)
s_add_u32 s{S_K}, s6, s45
s_addc_u32 s{S_K+1}, s7, 0
s_add_u32 s{S_Q}, s4, s46
s_addc_u32 s{S_Q+1}, s5, 0
s_add_u32 s{S_V}, s40, s45
s_addc_u32 s{S_V+1}, s41, 0
""")
    TL(p, -5)
    QT = V_O
    def toks(s):
        out = []
        for tk in s.split():
            if tk[0] == 'q':
                xs = range(6) if tk == 'q' else [int(c) for c in tk[1:]]
                for x in xs:
                    g = G(); g.e(f"s_mov_b32 s51, {x*4096}")
                    g.e(f"buffer_load_dwordx4 {vr(QT+x*4,4)}, v{T+4}, s[{S_Q}:{S_Q+3}], s51 offen {qflag}", vm=('Q', x)); out.append(g)
            else:
                kv, pp = tk[0].upper(), int(tk[1])
                for j in range(4):
                    g = G()
                    if j == 0: m0(g, pp + 4*(kv == 'V')); g.e("s_nop 0")
                    dma(g, kv, 0, pp, j, S_O0); out.append(g)
        return out
    for g in toks(pre): p.ext(g)
    p.raw(f"""
s_add_u32 s{S_O}, s42, s46
s_addc_u32 s{S_O+1}, s43, 0
s_mov_b32 s{S_IT}, 0
s_mov_b32 s54, {tog<<US}
s_mov_b32 s55, {tog<<US}
s_mov_b32 s{S_C}, 0x{f2u(SCALE):08x}
s_mov_b32 s{S_C+1}, 0x{f2u(SCALE):08x}
v_lshrrev_b32 v{T+2}, 2, v{L}            ; row = 4g + (i>>2)
v_and_b32 v{T+3}, 7, v{T+2}
v_lshlrev_b32 v{T+3}, 5, v{T+3}
v_xor_b32 v{T+3}, s49, v{T+3}            ; ((2w) ^ (row&7)) * 32
v_lshl_add_u32 v{T+3}, v{T+2}, 8, v{T+3}
v_and_b32 v{T+2}, 3, v{L}
v_lshl_add_u32 v{T+3}, v{T+2}, 3, v{T+3}
v_add_u32 v{V_VRD}, s{S_M0+4}, v{T+3}
v_lshlrev_b32 v{T+2}, 4, v{L}
v_add_u32 v{V_AW}, s48, v{T+2}
v_add_u32 v{T+2}, s50, v{T+2}
v_add_u32 v{T+2}, 0x{SPARE:x}, v{T+2}
v_lshlrev_b32 v{V_LR}, 4, v{T+1}
v_add_u32 v{V_LR}, 0x{LZONE:x}, v{V_LR}
v_lshl_add_u32 v{V_LW}, s{S_W}, 2, v{V_LR}
v_lshlrev_b32 v{V_OA}, 8, v{T+1}
v_and_b32 v{T+3}, 16, v{L}
v_lshl_add_u32 v{V_OA}, v{T+3}, 1, v{V_OA}
v_lshrrev_b32 v{T+3}, 5, v{L}
v_lshl_add_u32 v{V_OA}, v{T+3}, 4, v{V_OA}
v_add_u32 v{V_OA}, s49, v{V_OA}
v_mov_b32 v{V_G}, 0
v_mov_b32 v{T+3}, 0x3f803f80
s_sub_u32 s51, 0x{SPARE:x}, s48
""")
    for nu in range(1, 8): p.e(f"v_xor_b32 v{V_VRD+nu}, {nu<<5}, v{V_VRD}")
    for k in range(1, 4): p.e(f"v_xor_b32 v{V_RA+k-1}, 0x{k<<15:x}, v{V_AW}")
    if one1:
        p.e(f"v_cmp_eq_u32 vcc, 0, v{T+1}")
        p.e(f"v_lshl_add_u32 v{V_LW}, v{T}, 11, v{V_LW}")
        p.e("s_nop 0")
        p.e(f"v_cndmask_b32 v{T+3}, 0, v{T+3}, vcc")
    for r in range(4): p.e(f"v_accvgpr_write_b32 a{A_ONE+r}, v{T+3}")
    for ks in range(4): p.e(f"v_add_u32 v{T+6+ks}, s51, v{V_KRD+ks}")
    for r in range(32): p.e(f"v_mov_b32 v{oreg(5,0)+r}, 0")
    for r in range(4): p.e(f"v_accvgpr_write_b32 a{A_LS+20+r}, 0")
    if mode == 'lag':
        if cls[0] == 'g': p.e(f"s_and_b32 s53, s53, {int(cls[1])}")
        elif cls[0] == 't':
            p.e("s_and_b32 s53, s53, 3"); p.e("s_lshl_b32 s53, s53, 2")
            p.e(f"s_lshr_b32 s53, 0x{cls[1:][::-1]}, s53"); p.e("s_and_b32 s53, s53, 3")
        p.e(f"s_lshl_b32 s53, s53, {US}")
        p.e("s_xor_b32 s52, s52, s53")
        for q in range(4):
            p.e(f"s_xor_b32 s51, s52, {q<<US}")
            p.e(f"s_cmp_eq_u32 s53, {q<<US}")
            p.e(f"s_cselect_b32 s{S_OFF+q}, 2, 1")
            p.e(f"s_cselect_b32 s{S_OL+q}, 1, 7")
            p.e(f"s_lshl_b32 s{S_OFF+q}, s{S_OFF+q}, {TS}")
            p.e(f"s_lshl_b32 s{S_OL+q}, s{S_OL+q}, {TS}")
            p.e(f"s_add_u32 s{S_OFF+q}, s{S_OFF+q}, s51")
            p.e(f"s_add_u32 s{S_OL+q}, s{S_OL+q}, s51")
            if tog:
                p.e(f"s_cmp_eq_u32 s53, {q<<US}")
                p.e(f"s_cselect_b32 s51, {tog<<US}, 0")
                p.e(f"s_xor_b32 s{S_OFF+q}, s{S_OFF+q}, s51")
    else:
        for q in range(4):
            if mode in ('own', 'gap'): p.e(f"s_xor_b32 s{S_OFF+q}, s52, {(q<<US) + (1<<TS)}")
            else: p.e(f"s_mov_b32 s{S_OFF+q}, {(q<<US) + (1<<TS)}")
    md = toks(mid); k0 = 0
    for x in range(24):
        r = QT + x
        if x % 4 == 0: p.waitvm(('Q', x//4))
        if x == 0: TL(p, -4)
        if x == 20: TL(p, -3)
        t2 = T + 10 + (x % 2)*2
        p.e(f"v_lshlrev_b32 v{t2}, 16, v{r}")
        p.e(f"v_and_b32 v{t2+1}, 0xffff0000, v{r}")
        p.e(f"v_pk_mul_f32 {vr(t2,2)}, {vr(t2,2)}, s[{S_C}:{S_C+1}]")
        p.e(f"v_cvt_pk_bf16_f32 v{r}, v{t2}, v{t2+1}")
        if x % 4 == 3:
            p.e(f"ds_write_b128 v{T+2}, {vr(r-3,4)} offset:{(x//4)*4096}", lg=('QW',), wr={'QS'})
        k1 = len(md)*(x+1)//24
        for g in md[k0:k1]: p.ext(g)
        k0 = k1
    p.e("s_waitcnt lgkmcnt(0)")
    p.e("s_barrier", pub={'QS'})
    TL(p, -2)
    po = toks(post)
    for b in range(6):
        for ks in range(4):
            p.e(f"ds_read_b128 {qreg(b,ks)}, v{T+6+ks} offset:{b*4096}", lg=('QR', b))
    for g in po: p.ext(g)
    for f in range(16):
        if f % 4 == 0: p.waitvm(('K', 0, f//4))
        if f == 12: TL(p, -1)
        rd_k(p, 0, f)
    used = (pre + ' ' + mid + ' ' + post).split()
    rem0 = [q for q in range(4) if f"v{q}" not in used]
    assert all(f"k{q}" in used for q in range(4))
    dl0 = [('V', 0, q, S_O0) for q in rem0] + [('K', 1, q, S_OFF) for q in range(4)] + [('V', 1, q, S_OFF) for q in vperm]
    if ord0:
        o_ = [(tk[0].upper(), int(tk[0].isupper()), int(tk[1]), S_OFF if tk[0].isupper() else S_O0) for tk in ord0.split()]
        assert sorted(o_) == sorted(dl0[:-4]); dl0 = o_ + dl0[-4:]
    if mode == 'gap': dl0.append(('K', 2, 0, S_OFF))
    m0(p, dl0[0][2] + 4*(dl0[0][0] == 'V'))
    if tline: TL(p, 0)
    else: p.waitlg(('K', 0, 3))
    def salu(g, k, last=True):
        if k < 4: g.e(f"s_add_u32 s{S_OFF+k}, s{S_OFF+k}, {1<<TS}")
        if k >= 11: g.e(f"s_xor_b32 s{S_OFF+k-11}, s{S_OFF+k-11}, s54")
        if k in (9, 10): q = (k-9)*2; g.e(f"s_xor_b64 s[{S_OFF+q}:{S_OFF+q+1}], s[{S_OFF+q}:{S_OFF+q+1}], s[54:55]")
        if k == 4: g.e(f"s_add_u32 s{S_IT}, s{S_IT}, 1")
        if k == 5: g.e(f"s_cmp_lt_u32 s{S_IT}, 5")
        if k in (6, 7): q = (k-6)*2; g.e(f"s_cselect_b64 s[{S_OFF+q}:{S_OFF+q+1}], s[{S_OFF+q}:{S_OFF+q+1}], s[{S_OL+q}:{S_OL+q+1}]")
        if k == 8: g.e(f"s_cmp_lt_u32 s{S_IT}, 6")
    def x_wl(g, b): g.e(f"ds_write_b32 v{V_LW}, a{A_LS+4*b} offset:{b*256}", lg=('XW', b), wr={('X', b)})
    def x_w(g, b, j): g.e(f"ds_write_b128 v{V_AW}, {vr(oreg(b,2+j),4)} offset:{(b%5)*6144+j*1024}", lg=('XW', b), wr={('X', b), ('K', 0)})
    def lz(b): return (V_KDMA, V_VDMA, V_KRD)[b % 3]
    def x_rl(g, b): g.e(f"ds_read_b128 {vr(lz(b),4)}, v{V_LR} offset:{b*256}", lg=('XL', b))
    def x_r(g, b, j): g.e(f"ds_read_b128 {vr(oreg(b,2+j),4)}, v{V_RA+j//2} offset:{(b%5)*6144+j*1024}", lg=('XR', b, j//2))
    def combine(b, pk):
        out = []
        def add(cls_, c, txt=None, wait=None):
            g = G()
            if wait: g.waitlg(wait)
            else: g.raw(txt)
            out.append((cls_, c, g))
        o = oreg(b, 0); z = lz(b); R = V_R + b % 2
        add('post', 4, wait=('XL', b))
        add('val', 4, f"v_add_f32 v{z}, v{z}, v{z+1}")
        add('val', 4, f"v_add_f32 v{z+2}, v{z+2}, v{z+3}")
        add('val', 4, f"v_add_f32 v{z}, v{z}, v{z+2}")
        add('val', 8, f"v_rcp_f32 v{R}, v{z}")
        for k in range(3):
            add('post', 4, wait=('XR', b, k))
            for r in range(0, 8, 2 if pk else 1):
                if pk: add('val', 4, f"v_pk_add_f32 {vr(o+r,2)}, {vr(o+r,2)}, {vr(o+8+8*k+r,2)}")
                else: add('val', 4, f"v_add_f32 v{o+r}, v{o+r}, v{o+8+8*k+r}")
                if k == 0 and r == 0: add('val', 4, f"v_max3_f32 v{V_G}, v{V_G}, v{z}, v{R}")
        for r in range(0, 8, 2 if pk else 1):
            if pk: add('val', 4, f"v_pk_mul_f32 {vr(o+r,2)}, {vr(o+r,2)}, {vr(V_R,2)} op_sel:[0,{b%2}] op_sel_hi:[1,{b%2}]")
            else: add('val', 4, f"v_mul_f32 v{o+r}, v{o+r}, v{R}")
        for k in (0, 1, 2, 3): add('val', 4, f"v_cvt_pk_bf16_f32 v{o+k}, v{o+2*k}, v{o+2*k+1}")
        add('val', 4, f"s_mov_b32 s51, {b*4096}")
        add('val', 8, f"v_permlane16_swap_b32 v{o}, v{o+2}")
        add('val', 8, f"v_permlane16_swap_b32 v{o+1}, v{o+3}")
        add('mem', 8, f"buffer_store_dwordx4 {vr(o,4)}, v{V_OA}, s[{S_O}:{S_O+3}], s51 offen {oflag if b < nwt else oflag2}")
        return out
    def render(g, S, mf, t):
        for sg in range(S.n):
            mf(g, sg)
            for it in sorted(S.mem[sg], key=lambda it: it[0] == 'dma'):
                if it[0] == 'dma': dma(g, it[1], it[2] + t, it[3], it[4], it[5])
                if it[0] == 'rv': rd_v(g, t, it[1])
                if it[0] == 'rk': rd_k(g, t+1, it[1])
                if it[0] == 'g': g.ext(it[1])
            for it in S.val[sg]:
                if it[0] == 'exp': sm_exp(g, it[1])
                if it[0] == 'cvt': sm_cvt(g, it[1], it[2])
                if it[0] == 'g': g.ext(it[1])
            for it in S.post[sg]:
                if it[0] == 'm0': m0(g, it[1])
                if it[0] == 'wvm': g.waitvm([(it[1], t + it[2], q) for q in it[3]])
                if it[0] == 'wlg': g.waitlg((it[1], t + it[2], it[3]))
                if it[0] == 'salu': salu(g, it[1])
                if it[0] == 'g': g.ext(it[1])
    E0 = 6
    def softmax(S, base, pr, pace, lo=0, hi=16):
        for i in range(lo, hi):
            s = base + E0 + pace*i
            S.put('val', ('exp', i), 8, s)
            if i % 2: S.put('val', ('cvt', pr, i//2), 4, s + 1)
    NL = (PER - E0)//2
    def vreads(S, lo0, use0, cap=8):
        vs = []
        for x in range(32):
            lo = max(lo0 + x//2, vs[-1] if vs else 0)
            vs.append(S.place('mem', ('rv', x), 4, lo, max(lo, min(lo + 3, use0 + x//2 - 8)), cap))
        S.place('post', ('wvm', 'V', 0, range(4)), 4, vs[0] - 4, vs[0] - 1, cap)
        for f in (0, 6, 12):
            f1 = min(f + 5, 15); hi = use0 + f - 1
            S.place('post', ('wlg', 'V', 0, f1), 4, min(hi, max(vs[2*f1+1] + 6, hi - 3)), hi, cap)
        return vs
    def kreads(S, lo0, end, cap=8):
        ks_ = []
        for f in range(16):
            lo = max(lo0 + f, ks_[-1] if ks_ else 0)
            ks_.append(S.place('mem', ('rk', f), 4, lo, lo + 3, cap))
        S.place('post', ('wvm', 'K', 1, (0, 1)), 4, ks_[0] - 4, ks_[0] - 1, cap)
        S.place('post', ('wvm', 'K', 1, (2, 3)), 4, ks_[8] - 3, ks_[8] - 1, cap)
        if mode == 'gap': S.put('post', ('wlg', 'K', 1, 3), 4, ks_[3] + 7)
        S.place('post', ('wlg', 'K', 1, 15), 4, min(ks_[15] + 6, end), end, cap)
        return ks_
    def dmas(S, dl, s0, step, vfree, nxt, cap=8, vstep=False, at={}, gaps={}):
        ds = []
        for n, (kv, t, q, so) in enumerate(dl):
            for j in range(4):
                lo = ds[-1] + step - 1 if ds else s0
                lo = max(lo, s0 + len(ds)*step)
                if kv == 'V' and t == 1: lo = max(lo, vfree + (step*(len(ds) - 16) if vstep else 0))
                if (kv, t, q) in at: lo = max(lo, at[(kv, t, q)] + step*j)
                if j == 0 and (kv, t, q) in gaps: lo += gaps[(kv, t, q)]; s0 += gaps[(kv, t, q)]
                ds.append(S.place('mem', ('dma', kv, t, q, j, so), 8, lo, lo + min(3, step - 1), cap))
        for n in range(len(dl)):
            lo = ds[n*4+3]; hi = ds[n*4+4] - 1 if n + 1 < len(dl) else lo + 4
            grp = (dl[n+1][2] + 4*(dl[n+1][0] == 'V')) if n + 1 < len(dl) else nxt
            S.place('post', ('m0', grp), 4, lo, hi, cap)
        return ds
    seq = [('qk', b) for b in range(lag0)]
    for b in range(lag0, 6): seq += [('qk', b), ('pv', b - lag0)]
    seq += [('pv', b) for b in range(6 - lag0, 5)]
    mf0 = []; start = {}
    for k, b in seq:
        start[(k, b)] = len(mf0); mf0 += [(k, b, f) for f in range(16 if k == 'qk' else 18)]
    p0 = lambda b: preg(b) if b >= 4 else oreg(b+1, 0)
    S0 = Slots(len(mf0))
    for n, (k, b) in enumerate(seq):
        if k == 'qk': softmax(S0, start[(k, b)], p0(b), 1 if seq[n+1][0] == 'qk' else 2, 0, NL if b == 5 else 16)
    for f in (7, 11, 15): S0.put('post', ('wlg', 'K', 0, f), 4, f - 5)
    use0 = start[('pv', 0)] + 2
    vs0 = vreads(S0, use0 - 22, use0, 12)
    k0_ = kreads(S0, max(start[('qk', 5)], S0.n - 26), S0.n - 1)
    d0 = dmas(S0, dl0, 0, step0, use0 + 12, 1 if mode == 'gap' else 0, 16, at={('K', 2, 0): k0_[3] + 8, ('K', 1, 1): 3, ('K', 1, 2): 7, ('K', 1, 3): 11},
              gaps={('K', 1, 1): gap0[0], ('V', 1, vperm[1]): gap0[1]})
    assert d0[-4] < S0.n - 1
    def advance(S, ds, tail):
        if mode == 'gap':
            s0 = ds[-17] + 1
            for k in [0] + ([11] if tog else []): s0 = S.place('post', ('salu', k), 4, s0, s0 + 3)
            s0 = ds[-5]
            for k in [1, 2, 3] + ([12, 10] if tog else []) + tail: s0 = S.place('post', ('salu', k), 4, s0, min(s0 + 3, S.n - 1))
        else:
            s0 = ds[-1] + 1
            for k in [0, 1, 2, 3] + ([9, 10] if tog else []) + tail: s0 = S.place('post', ('salu', k), 4, s0, s0 + 3)
    advance(S0, d0, [])
    t0 = G(); T0[0] = t0
    def mfa(g, sg):
        k, b, f = mf0[sg]
        if k == 'qk': mf_qk(g, b, f)
        else: mf_pv(g, b, f, p0(b), True)
    render(t0, S0, mfa, 0)
    TL(t0, 1)
    if verbose: print("tile0 dma", d0, "vrd", vs0, "krd", k0_, "n", S0.n)
    NS = 6*PER
    S = Slots(NS, True)
    for pb in range(6): softmax(S, pb*PER, preg(pb), 2)
    if mode == 'gap':
        dl = [('K', 1, q, S_OFF) for q in (1, 2, 3)] + [('V', 1, q, S_OFF) for q in range(4)] + [('K', 2, 0, S_OFF)]
        at = {('V', 1, 0): gsl[1], ('K', 2, 0): gsl[3]}
        for q in (1, 2, 3): at[('V', 1, q)] = gsl[2] + (q-1)*4*dmastep
        dsl = dmas(S, dl, gsl[0], dmastep, PER + 33, 1, at=at)
        assert dsl[-1] < NS - 1
    else:
        dl = [('K', 1, q, S_OFF) for q in range(4)] + [('V', 1, q, S_OFF) for q in vperm]
        dsl = dmas(S, dl, dma0, dmastep, max(PER + 33, vstart), 0, vstep=True)
    vs = vreads(S, 18 + vrd0, PER + 18)
    ks_ = kreads(S, 5*PER, NS - 1)
    advance(S, dsl, [4, 5, 6, 7, 8] if mode == 'lag' else [4, 8])
    if verbose: print("dma", dsl); print("vrd", vs); print("krd", ks_); print("occ", S.occ)
    def mfl(g, sg):
        pb, s = sg // PER, sg % PER
        if pb == 6: mf_pv(g, 5, s, preg(5))
        elif s < 16: mf_qk(g, pb, s)
        else: mf_pv(g, (pb-1) % 6, s - 16, preg(pb-1))
    def tile(t):
        g = G(); render(g, S, mfl, t)
        if tline:
            g.raw(tl_issue()); g.e("s_waitcnt lgkmcnt(0)"); g.e(f"s_add_u32 s3, s{S_IT}, {1+TB}"); g.raw(tl_save(0, "s3")); g.e(f"s_cmp_lt_u32 s{S_IT}, 6")
        g.e("s_cbranch_scc1 L_loop")
        return g
    S7 = Slots(NS + 18)
    softmax(S7, -PER, preg(5), 2, NL, 16)
    for pb in range(6): softmax(S7, pb*PER, preg(pb), 1 if pb == 5 else 2)
    vreads(S7, 18 + vrd0, PER + 18)
    if mode == 'gap': S7.put('post', ('wvm', 'K', 1, (0,)), 4, PER + 15)
    rest = []
    def mkg(f, *a):
        g = G(); f(g, *a); return g
    cur = 0
    bars = {}
    for b in range(6):
        pv0 = (b+1)*PER + 16 if b < 5 else NS
        S7.put('mem', ('g', mkg(x_wl, b)), 4, pv0 + 4)
        w = pv0 + 5
        ws_ = wstep7 if b < 4 else 2
        for j in range(6): w = S7.place('mem', ('g', mkg(x_w, b, j)), 4, max(w, pv0 + ws_*j + 6), max(w, pv0 + ws_*j + 6) + (1 if b < 5 else 0), cap7)
        bars[b] = w + bar7
    def barrier(g, b): g.waitlg(('XW', b)); g.e("s_barrier", pub={('X', b)})
    for b in range(5):
        S7.put('post', ('g', mkg(barrier, b)), 8, bars[b])
        r = S7.place('mem', ('g', mkg(x_rl, b)), 4, bars[b] + 1, bars[b] + 1, cap7)
        for j in range(6): r = S7.place('mem', ('g', mkg(x_r, b, j)), 4, r + rstep7, r + rstep7, cap7)
        bars[b] = (bars[b], r)
    for b in range(5):
        cur = max(cur, bars[b][0] + 1 + rdw7)
        items = combine(b, False); prevc = None
        for n, (c_, cost_, g) in enumerate(items):
            order = {'mem': 0, 'val': 1, 'post': 2}
            if prevc is not None and order[c_] < order[prevc]: cur += 1
            while cur < S7.n and S7.occ[cur] + cost_ > cap7: cur += 1
            if cur >= S7.n: rest += [x[2] for x in (items[n:] if n else combine(b, True))]; break
            S7.put(c_, ('g', g), cost_, cur); prevc = c_
        if verbose: print("combine", b, "ends at slot", cur, "bar", bars[b])
    t7 = G(); render(t7, S7, mfl, 7)
    if 'b' in x7: t7.L = [x for x in t7.L if not x[0].startswith('s_barrier')]
    if 'w' in x7: t7.L = [(('s_nop 0', x[1]) if x[0].startswith('ds_write_b128') else x) for x in t7.L]
    if 'r' in x7: t7.L = [(('s_nop 0', x[1]) if x[0].startswith('ds_read_b128 v[') and 'XR' in x[1]['lg'] else x) for x in t7.L]
    if 's' in x7: t7.L = [x for x in t7.L if not x[0].startswith('buffer_store')]
    if verbose: print("occ7", S7.occ, "rest", len(rest))
    TL(t7, 8)
    nr = len(rest)//2
    for g in rest[:nr]: t7.ext(g)
    barrier(t7, 5)
    x_rl(t7, 5)
    for j in range(6): x_r(t7, 5, j)
    for g in rest[nr:]: t7.ext(g)
    for c_, cost_, g in combine(5, True):
        if g.L[0][0].startswith('v_permlane') and 0: t7.e("s_nop 0")
        t7.ext(g)
    txt7 = [t for t, m in t7.L]
    for b in range(3):
        assert txt7.index(f"v_max3_f32 v{V_G}, v{V_G}, v{lz(b)}, v{V_R + b % 2}") < txt7.index(mkg(x_rl, b+3).L[0][0])
    t7.raw(f"""
s_mov_b32 s51, 0x{f2u(thresh if not force_fb else 0.0):08x}
v_cmp_nge_f32 vcc, s51, v{V_G}
{'' if skip else 's_cbranch_vccnz L_fallback'}
L_fin:
""")
    TL(t7, 9)
    if stamps:
        t7.e("s_waitcnt vmcnt(0)")
        TL(t7, 10)
        t7.raw(stamp_end(4, 2, S_W))
        if tline: t7.raw(tl_store(0, 2))
    t7.e("L_end:")
    t7.e("s_endpgm")
    fb = G()
    M = V_P + 8
    fb.e("L_fallback:")
    fb.e("s_waitcnt vmcnt(0) lgkmcnt(0)")
    fb.e("s_barrier")
    addr_dma(fb)
    for b in range(6): fb.e(f"v_mov_b32 v{M+b}, 0xff800000")
    def fb_init():
        for q in range(4): fb.e(f"s_mov_b32 s{S_OFF+q}, {q<<US}")
        fb.e(f"s_mov_b32 s{S_IT}, 0")
    def fb_load(kvs):
        for kv in kvs:
            for q in range(4):
                m0(fb, q + 4*(kv == 'V')); fb.e("s_nop 0")
                for j in range(4): dma(fb, kv, 0, q, j, S_OFF)
        fb.e("s_waitcnt vmcnt(0)")
        for f in range(16): rd_k(fb, 0, f)
        if 'V' in kvs:
            for x in range(32): rd_v(fb, 0, x)
        fb.e("s_waitcnt lgkmcnt(0)")
    def fb_next(lbl):
        for k in range(5): salu(fb, k)
        fb.e(f"s_cmp_lt_u32 s{S_IT}, 8")
        fb.e(f"s_cbranch_scc1 {lbl}")
    fb_init()
    fb.e("L_fb1:")
    fb_load('K')
    for b in range(6):
        for f in range(16): mf_qk(fb, b, f)
        fb.e("s_nop 9")
        for i in range(0, 16, 2): fb.e(f"v_max3_f32 v{M+b}, v{V_S+i}, v{V_S+i+1}, v{M+b}")
    fb_next("L_fb1")
    fb.raw(f"""
v_lshlrev_b32 v{T}, 2, v{L}
s_lshl_b32 s51, s{S_W}, 8
s_add_u32 s51, s51, 0x{MZONE:x}
v_add_u32 v{T}, s51, v{T}
v_and_b32 v{T+1}, 15, v{L}
v_lshlrev_b32 v{T+1}, 2, v{T+1}
v_add_u32 v{T+1}, 0x{MZONE:x}, v{T+1}
""")
    for b in range(6): fb.e(f"ds_write_b32 v{T}, v{M+b} offset:{b*1024}")
    fb.e("s_waitcnt lgkmcnt(0)")
    fb.e("s_barrier")
    for b in range(6):
        for k in range(16): fb.e(f"ds_read_b32 v{V_O+k}, v{T+1} offset:{b*1024+k*64}")
        fb.e("s_waitcnt lgkmcnt(0)")
        for k in range(0, 16, 2): fb.e(f"v_max3_f32 v{M+b}, v{V_O+k}, v{V_O+k+1}, v{M+b}")
    for r in range(192): fb.e(f"v_mov_b32 v{V_O+r}, 0")
    for r in range(24): fb.e(f"v_accvgpr_write_b32 a{A_LS+r}, 0")
    fb_init()
    fb.e("L_fb2:")
    fb_load('KV')
    for b in range(6):
        for f in range(16): mf_qk(fb, b, f)
        fb.e("s_nop 9")
        for i in range(16): fb.e(f"v_sub_f32 v{V_S+i}, v{V_S+i}, v{M+b}")
        for i in range(16): sm_exp(fb, i)
        fb.e("s_nop 0")
        for k in range(8): sm_cvt(fb, V_P, k)
        fb.e("s_nop 1")
        for s in range(18): mf_pv(fb, b, s, V_P)
    fb_next("L_fb2")
    fb.e("s_nop 9")
    for b in range(6):
        x_wl(fb, b)
        for j in range(6): x_w(fb, b, j)
        barrier(fb, b)
        x_rl(fb, b)
        for j in range(6): x_r(fb, b, j)
        for c_, cost_, g in combine(b, False): fb.ext(g)
    fb.e("s_branch L_fin")

    return dict(p=p, t0=t0, tile=tile, t7=t7, fb=fb, verbose=verbose, skip=skip, align=align)

def finish(d):
    p, t0, t7, fb = d['p'], d['t0'], d['t7'], d['fb']
    bodies = [d['tile'](t).L for t in range(1, 7)]
    head = p.L + t0.L
    trace = head + sum(bodies, []) + t7.L
    res = resolve(trace)
    nb = len(bodies[0]); n0 = len(head)
    rb = []
    for k in range(nb):
        c = [res[n0 + it*nb + k] for it in range(6)]
        rb.append(None if c[0] is None else (c[0][0], min(x[1] for x in c)))
        if c[0] is not None and len(set(c)) != 1: print("wait differs", c)
    for it in range(1, 6): assert [t for t, m in bodies[it]] == [t for t, m in bodies[0]]
    out_pre = emit(head, res[:n0]); out_body = emit(bodies[0], rb); out_tail = emit(t7.L, res[n0 + 6*nb:])
    out_fb = emit(fb.L, resolve(fb.L))
    nbad = 0 if d['skip'] else readiness(head + bodies[0] + bodies[1] + t7.L, out_pre + out_body + out_body + out_tail, 'main')
    nbad += readiness(fb.L, out_fb, 'fb')
    if d['verbose']:
        print("predicted cycles tile0/loop/tile7", predict(out_pre), predict(out_body), predict(out_tail)); print([l for l in out_body if 'waitcnt' in l])
    sk = d['skip']
    if 'd' in sk: out_body = [l for l in out_body if not l.startswith('buffer_load') and 'vmcnt' not in l]
    if 'z' in sk: out_body = [l for l in out_body if not l.startswith(('s_add_u32 s2', 's_xor_b64', 's_cselect_b64'))]
    if 'y' in sk: out_body = [re.sub(r's\[16:19\], s2\d|s\[12:15\], s2\d', 's[12:15], s24', l) for l in out_body]
    if 'x' in sk: out_body = [re.sub(r', s2\d offen', ', s15 offen', l) for l in out_body]
    if 'h' in sk: out_body = [l for l in out_body if not (l.startswith('buffer_load') and 's[16:19]' in l) and 'vmcnt' not in l]
    if 'k' in sk: out_body = [l for l in out_body if not l.startswith('ds_read_b128')]
    if 'v' in sk: out_body = [l for l in out_body if not l.startswith('ds_read_b64')]
    if 'e' in sk: out_body = [l for l in out_body if not l.startswith('v_exp')]
    if 'm' in sk: out_body = [l.replace('v_exp_f32', 'v_mov_b32') for l in out_body]
    if 'c' in sk: out_body = [l for l in out_body if not l.startswith('v_cvt')]
    if 'o' in sk: out_body = [l for l in out_body if not l.startswith(MF + ' a[')]
    if 'q' in sk: out_body = [l for l in out_body if not (l.startswith(MF + ' v[2') and int(l.split('[')[1].split(':')[0]) >= V_S)]
    if 'p' in sk: out_body = [l for l in out_body if not (l.startswith(MF + ' v[') and int(l.split('[')[1].split(':')[0]) < V_S)]
    if not sk: nbad += hazard.check(out_pre + out_body + out_body + out_tail + out_fb, 'main', timed=True)
    assert nbad == 0 or d['skip']
    lines = out_pre + ([f".p2align {d['align']}"] if d['align'] else []) + ["L_loop:"] + out_body + out_tail + out_fb
    txt = "\n".join(l if l.endswith(':') or l.startswith('.') else "    " + l for l in lines)
    return wrap(txt, 256, 256, 163840, nsgpr=96)
def make(**kw): return finish(gen(**kw))

if __name__ == "__main__":
    print(build(make(verbose=True), "a3"))
```

```python
import sys, re
from asmlib import *
from gcore import *
import hazard
from gen_a3 import Slots
SCALE = 1.4426950408889634 / (128 ** 0.5)
A_Q, A_K, A_V, A_LS, A_ONE = 0, 96, 160, 224, 248
L = 1
V_AW, V_RA, V_H16, V_H4, V_LW, V_LR, V_OA, V_G = 2, 3, 4, 5, 6, 7, 8, 9
V_R = 10
V_KDMA = 12
V_VDMA = 16
V_X = 18
V_KRD = 20
V_VRD = 24
V_O = 32
V_S = 224
V_P = 240
T = V_S
S_Q, S_K, S_V, S_O, S_H, S_D = 8, 12, 16, 20, 32, 44
S_OFF, S_M0, S_M00 = 24, 28, 60
S_C, S_IT, S_FI = 36, 38, 39
S_RX, S_TX, S_CNT, S_GRP, S_MASK, S_W = 56, 64, 67, 72, 73, 74
S_FO = 59
PIECE = ['0', 's56', 's57', 's58', 's64', 's65', 's66', 's61', 's62']
QS = 114688
LZONE = 131072
HOFF = 0x200000
MF = "v_mfma_f32_16x16x32_bf16"
NUS = [4, 5, 6, 7, 0, 1, 2, 3]
PER = 34
def oreg(b, nu): return V_O + (b*8+nu)*4
def qreg(b, ks): return ar(A_Q + (b*4+ks)*4, 4)
def kreg(kb, ks): return ar(A_K + (kb*4+ks)*4, 4)
def vreg(nu, u): return A_V + (nu*2+u)*4

def gen(oflag='sc0 sc1 nt', hflag='sc0 sc1', stamps=False, thresh=2.0**40, skip='', vat=(3, 4), kat=(100, 4), k1at=0, k2at=0, vrd0=16, krd0=0, vrd6=8, verbose=False, tline=False,
        pre='q012345 k0', mid='k1', post='v0 v1', lag0=5, step0=4, cap7=12, force_fb=False, pst=False, wstep7=4, wsend=2, rstep7=1, bar7=4, rdw7=8,
        rx=(320, 345, 370), hold=(0, 0, 0), xmap=False, spin=3000, x7='', align=6, clr0=0, clrit=-1, clrat=72, spread=None, GB=10, hstep=16, kmrg=False, fchk=165, early=(0, 0, 0), fbyte=False, fodd=0, warm='', fit=3, dot=False, cnt=False, vb0=22):
    PS = 1024 << GB
    def m0(g, r): g.e(f"s_mov_b32 m0, s{r}")
    def m0r(kv, q): return S_M0 + 2*(kv == 'V') + q
    def sof(kv): return S_OFF + 2*(kv == 'V')
    def dma(g, kv, t, q, j, so):
        if kv == 'K': g.e(f"buffer_load_dwordx4 v{V_KDMA+j}, s[{S_K}:{S_K+3}], s{so+q} offen offset:{j*1024} lds", vm=('K', t, q), xw=('K', t))
        else: g.e(f"buffer_load_dwordx4 v{V_VDMA+j%2}, s[{S_V}:{S_V+3}], s{so+q} offen offset:{j*1024} lds", vm=('V', t, q), xw=('V', t))
    def rd_k(g, t, f):
        kb, ks = f//4, f % 4
        g.e(f"ds_read_b128 {kreg(kb,ks)}, v{V_KRD+ks} offset:{kb*4096}", lg=('K', t, f), xr=('K', t))
    def rd_v(g, t, x):
        f, e2 = x//2, x % 2
        nu, u = NUS[f//2], f % 2
        g.e(f"ds_read_b64_tr_b16 {ar(vreg(nu,u)+e2*2,2)}, v{V_VRD+nu} offset:{(2*u+e2)*4096}", lg=('V', t, f), xr=('V', t))
    def mf_qk(g, b, f):
        kb, ks = f//4, f % 4
        d = vr(V_S + kb*4, 4)
        g.e(f"{MF} {d}, {kreg(kb,ks)}, {qreg(b,ks)}, {d if ks else 0}")
    def mf_pv(g, b, s, pr, first=False):
        u = s % 2
        if s < 2: o, a_ = ar(A_LS + b*4, 4), ar(A_ONE, 4)
        else: nu = NUS[s//2 - 1]; o, a_ = vr(oreg(b, nu), 4), ar(vreg(nu, u), 4)
        g.e(f"{MF} {o}, {a_}, {vr(pr + u*4, 4)}, {0 if first and u == 0 else o}")
    def sm_exp(g, i): g.e(f"v_exp_f32 v{V_S+i}, v{V_S+i}")
    def sm_cvt(g, pr, k): g.e(f"v_cvt_pk_bf16_f32 v{pr+k}, v{V_S+2*k}, v{V_S+2*k+1}")
    def preg(b): return V_P + (b % 2)*8
    TB = 5 if pst else 0
    def TL(g, idx):
        idx += TB
        if tline and idx >= 0: g.raw(tl_issue()); g.e("s_waitcnt lgkmcnt(0)"); g.raw(tl_save(0, idx))
    def mkg(f, *a):
        g = G(); f(g, *a); return g
    def txt(t, **m):
        g = G(); g.e(t, **m); return g
    def addr_dma(g, kbase):
        g.raw(f"""
v_lshrrev_b32 v{T}, 4, v{L}              ; g
v_and_b32 v{T+1}, 15, v{L}               ; i
v_xor_b32 v{T+2}, v{T+1}, v{T}           ; i ^ g
v_lshlrev_b32 v{T+3}, 8, v{T}            ; g*256
v_lshl_add_u32 v{V_KDMA}, v{T+2}, 4, v{T+3}
""")
        for j in range(1, 4): g.e(f"v_xor_b32 v{V_KDMA+j}, {j<<6}, v{V_KDMA}")
        g.raw(f"""
v_lshlrev_b32 v{T+5}, 8, v{T+1}
v_lshl_add_u32 v{T+5}, v{T+2}, 4, v{T+5}
v_add_u32 v{V_KRD}, s{kbase}, v{T+5}
v_lshlrev_b32 v{T+2}, 1, v{T}
v_xor_b32 v{T+2}, v{T+1}, v{T+2}         ; i ^ (g<<1)
v_lshl_add_u32 v{V_VDMA}, v{T+2}, 4, v{T+3}
v_xor_b32 v{V_VDMA+1}, 0x80, v{V_VDMA}
""")
        for ks in range(1, 4): g.e(f"v_xor_b32 v{V_KRD+ks}, {ks<<6}, v{V_KRD}")
    def addr_v(g, vbase, cx):
        g.raw(f"""
v_lshrrev_b32 v{T+2}, 2, v{L}            ; row = 4g + (i>>2)
v_and_b32 v{T+3}, 7, v{T+2}
v_lshlrev_b32 v{T+3}, 5, v{T+3}
v_xor_b32 v{T+3}, s{cx}, v{T+3}
v_lshl_add_u32 v{T+3}, v{T+2}, 8, v{T+3}
v_and_b32 v{T+2}, 3, v{L}
v_lshl_add_u32 v{T+3}, v{T+2}, 3, v{T+3}
v_add_u32 v{V_VRD}, s{vbase}, v{T+3}
""")
        for nu in range(1, 8): g.e(f"v_xor_b32 v{V_VRD+nu}, {nu<<5}, v{V_VRD}")
    p = G()
    p.e("s_cmp_ge_u32 s2, 256")
    p.e("s_cbranch_scc1 L_end")
    if stamps: p.raw(stamp_start())
    p.raw(f"""
s_load_dwordx4 s[4:7], s[0:1], 0
s_load_dwordx4 s[40:43], s[0:1], 16
s_load_dwordx4 s[56:59], s[0:1], 32
v_lshrrev_b32 v{T}, 6, v0
v_and_b32 v{L}, 63, v0
v_readfirstlane_b32 s{S_W}, v{T}
""")
    if xmap: p.raw("""
s_lshr_b32 s44, s2, 4
s_xor_b32 s44, s44, s2
s_and_b32 s44, s44, 1
s_mul_i32 s44, s44, 17
s_xor_b32 s2, s2, s44
""")
    p.raw(f"""
s_and_b32 s44, s2, 7
s_lshr_b32 s45, s2, 5
s_lshl_b32 s44, s44, 3
s_add_u32 s44, s44, s45          ; group
s_lshl_b32 s{S_GRP}, s44, 19
s_bfe_u32 s45, s2, 0x10003
s_lshl_b32 s44, s44, 1
s_add_u32 s44, s44, s45
s_mul_i32 s46, s44, 49152
s_bfe_u32 s47, s2, 0x10004
s_mul_i32 s52, s47, 12288
s_sub_u32 s53, 12288, s52
s_lshr_b32 s49, s{S_W}, 1
s_and_b32 s50, s{S_W}, 1           ; head
s_lshl_b32 s47, s47, 1
s_add_u32 s47, s47, s49
s_lshl_b32 s47, s47, 17
s_add_u32 s45, s47, s{S_GRP}       ; k / v offset
s_lshl_b32 s48, s49, 16
s_lshl_b32 s{S_OFF}, s50, 13
s_add_u32 s{S_OFF+1}, s{S_OFF}, 4096
s_mov_b64 s[{S_OFF+2}:{S_OFF+3}], s[{S_OFF}:{S_OFF+1}]
s_add_u32 s{S_M0}, s48, s{S_OFF}
s_add_u32 s{S_M0+1}, s{S_M0}, 4096
s_add_u32 s{S_M0+2}, s{S_M0}, 16384
s_add_u32 s{S_M0+3}, s{S_M0}, 20480
s_lshl_b32 s54, s{S_W}, 6
s_lshl_b32 s55, s{S_W}, 10
""")
    addr_dma(p, 48)
    p.raw(f"""
v_xor_b32 v{T+4}, s54, v{V_KDMA}
v_add_u32 v{T+4}, s55, v{T+4}
s_mov_b32 s{S_Q+2}, 49152
s_mov_b32 s{S_Q+3}, 0x20000
s_mov_b32 s{S_K+2}, 0x20000
s_mov_b32 s{S_K+3}, 0x20000
s_mov_b32 s{S_V+2}, 0x20000
s_mov_b32 s{S_V+3}, 0x20000
s_waitcnt lgkmcnt(0)
s_add_u32 s{S_Q}, s4, s46
s_addc_u32 s{S_Q+1}, s5, 0
s_add_u32 s{S_K}, s6, s45
s_addc_u32 s{S_K+1}, s7, 0
s_add_u32 s{S_V}, s40, s45
s_addc_u32 s{S_V+1}, s41, 0
""")
    TL(p, -5)
    QT = V_O
    def toks(s):
        out = []
        for tk in s.split():
            if tk[0] == 'q':
                for b in [int(c) for c in tk[1:]]:
                    for h in range(2):
                        g = G(); g.e(f"s_add_u32 s51, s{52 + b//3}, {h*24576 + (b%3)*4096}")
                        g.e(f"buffer_load_dwordx4 {vr(QT+(b*2+h)*4,4)}, v{T+4}, s[{S_Q}:{S_Q+3}], s51 offen", vm=('Q', b*2+h)); out.append(g)
            else:
                kv, pp = tk[0].upper(), int(tk[1])
                for j in range(4):
                    g = G()
                    if j == 0: m0(g, m0r(kv, pp)); g.e("s_nop 0")
                    dma(g, kv, 0, pp, j, sof(kv)); out.append(g)
        return out
    for g in toks(pre): p.ext(g)
    p.raw(f"""
s_mul_i32 s3, s50, 24576
s_add_u32 s46, s46, s3
s_add_u32 s46, s46, s53
s_add_u32 s{S_O}, s42, s46
s_addc_u32 s{S_O+1}, s43, 0
s_mov_b32 s{S_O+2}, 12288
s_mov_b32 s{S_O+3}, 0x20000
s_lshl_b32 s51, s44, 1
s_bfe_u32 s4, s2, 0x10004
s_add_u32 s51, s51, s4
s_lshl_b32 s51, s51, 2
s_add_u32 s51, s51, s{S_W}
s_lshr_b32 s4, s51, {GB}
s_mul_i32 s4, s4, {8*PS}
s_lshl_b32 s51, s51, 10
s_add_u32 s51, s51, s4
s_add_u32 s51, s51, 0x{HOFF:x}
s_add_u32 s4, s58, s51
s_addc_u32 s5, s59, 0
s_xor_b32 s51, s51, 0x1000
s_add_u32 s{S_H}, s58, s51
s_addc_u32 s{S_H+1}, s59, 0
s_mov_b32 s{S_H+2}, {8*PS+1024}
s_mov_b32 s{S_H+3}, 0x20000
s_mov_b32 s{S_D}, s56
s_mov_b32 s{S_D+1}, s57
s_mov_b32 s{S_D+2}, 256
s_mov_b32 s{S_D+3}, 0x20000
s_and_b32 s{S_FO}, s2, 0xfc
s_and_b32 s{S_MASK}, s2, 3
s_lshl_b32 s{S_MASK}, s{S_MASK}, 3
s_lshl_b32 s{S_MASK}, 1, s{S_MASK}
v_mov_b32 v{V_X}, {1 if fbyte else f's{S_MASK}'}
v_lshlrev_b32 v{V_X+1}, 8, v{L}
v_add_u32 v{V_X+1}, {'s2' if fbyte else f's{S_FO}'}, v{V_X+1}
{f's_load_dword s75, s[{S_D}:{S_D+1}], 0' if 'd' in warm else ''}
{f's_load_dword s76, s[4:5], 0' if 'h' in warm else ''}
{f's_load_dword s77, s[{S_O}:{S_O+1}], 0' if 'o' in warm else ''}
s_xor_b32 s{S_FO}, s{S_FO}, 16
s_cmp_eq_u32 s{S_W}, 0
s_cselect_b32 s{S_FI}, {fit}, 99
{f's_bfe_u32 s51, s2, 0x{0x10000+fodd:x}' if fodd else ''}
{f's_add_u32 s{S_FI}, s{S_FI}, s51' if fodd else ''}
s_mov_b32 s{S_IT}, 0
s_mov_b32 s{S_CNT}, 0
s_mov_b32 s{S_C}, 0x{f2u(SCALE):08x}
s_mov_b32 s{S_C+1}, 0x{f2u(SCALE):08x}
s_add_u32 s{S_M00}, s48, 16384
s_lshl_b32 s{S_M00+1}, s49, 7
""")
    addr_v(p, S_M00, S_M00+1)
    p.raw(f"""
v_lshlrev_b32 v{V_H16}, 4, v{L}
v_lshlrev_b32 v{V_H4}, 2, v{L}
v_lshl_add_u32 v{V_H4}, s{S_W}, 8, v{V_H4}
s_lshl_b32 s51, s50, 13
s_add_u32 s51, s51, s48
s_add_u32 s51, s51, 0x8000
v_add_u32 v{V_AW}, s51, v{V_H16}
v_xor_b32 v{V_RA}, 0x10000, v{V_AW}
s_add_u32 s51, s55, {QS}
v_add_u32 v{T+2}, s51, v{V_H16}
s_lshl_b32 s51, s50, 3
s_add_u32 s51, s51, {LZONE}
v_lshl_add_u32 v{V_LR}, v{T+1}, 4, s51
v_lshl_add_u32 v{V_LW}, s49, 2, v{V_LR}
v_lshlrev_b32 v{V_OA}, 8, v{T+1}
v_and_b32 v{T+3}, 16, v{L}
v_lshl_add_u32 v{V_OA}, v{T+3}, 1, v{V_OA}
v_lshrrev_b32 v{T+3}, 5, v{L}
v_lshl_add_u32 v{V_OA}, v{T+3}, 4, v{V_OA}
v_add_u32 v{V_OA}, s{S_M00+1}, v{V_OA}
v_mov_b32 v{V_G}, 0
v_mov_b32 v{T+3}, 0x3f803f80
s_add_u32 s3, s3, {QS}
s_sub_u32 s3, s3, s48
""")
    for r in range(4): p.e(f"v_accvgpr_write_b32 a{A_ONE+r}, v{T+3}")
    for r in range(4): p.e(f"v_accvgpr_write_b32 a{252+r}, -1")
    for ks in range(4): p.e(f"v_add_u32 v{T+6+ks}, s3, v{V_KRD+ks}")
    if 'u' in x7: p.e("s_lshl_b32 s60, s49, 11")
    for n in range(1, 9): p.e(f"s_mov_b32 {PIECE[n]}, {n*PS}")
    p.e("s_mov_b32 s54, 0x8000"); p.e("s_mov_b32 s55, 0x8000")
    for r in range(32): p.e(f"v_mov_b32 v{oreg(5,0)+r}, 0")
    for r in range(4): p.e(f"v_accvgpr_write_b32 a{A_LS+20+r}, 0")
    md = toks(mid); k0 = 0
    for x in range(48):
        r = QT + x
        if x % 4 == 0: p.waitvm(('Q', x//4))
        if x == 0: TL(p, -4)
        if x == 44: TL(p, -3)
        t2 = T + 10 + (x % 2)*2
        p.e(f"v_lshlrev_b32 v{t2}, 16, v{r}")
        p.e(f"v_and_b32 v{t2+1}, 0xffff0000, v{r}")
        p.e(f"v_pk_mul_f32 {vr(t2,2)}, {vr(t2,2)}, s[{S_C}:{S_C+1}]")
        p.e(f"v_cvt_pk_bf16_f32 v{r}, v{t2}, v{t2+1}")
        if x % 4 == 3:
            c = x//4
            p.e(f"ds_write_b128 v{T+2}, {vr(r-3,4)} offset:{((c%2)*6 + c//2)*4096}", lg=('QW',), xw=('Q', 0))
        k1 = len(md)*(x+1)//48
        for g in md[k0:k1]: p.ext(g)
        k0 = k1
    p.e("s_waitcnt lgkmcnt(0)")
    p.e("s_barrier")
    TL(p, -2)
    po = toks(post)
    for b in range(6):
        for ks in range(4):
            p.e(f"ds_read_b128 {qreg(b,ks)}, v{T+6+ks} offset:{b*4096}", lg=('QR', b), xr=('Q', 0))
    for g in po: p.ext(g)
    p.waitvm([('K', 0, 0), ('K', 0, 1)])
    p.e("s_barrier")
    TL(p, -1)
    for f in range(16): rd_k(p, 0, f)
    for ks in range(4): p.e(f"v_xor_b32 v{V_KRD+ks}, 0x8000, v{V_KRD+ks}")
    p.raw(f"s_mov_b64 s[{S_Q}:{S_Q+1}], s[4:5]\ns_mov_b32 s{S_Q+2}, {8*PS+1024}\ns_mov_b32 s63, 0")
    used = (pre + ' ' + mid + ' ' + post).split()
    rem0 = [q for q in range(2) if f"v{q}" not in used]
    dl0 = [('V', 0, q) for q in rem0] + [(kv, t, q) for kv, t in (('K', 1), ('V', 1), ('K', 2)) for q in range(2)]
    def adv(g, kv, k):
        if k < 2: g.e(f"s_add_u32 s{sof(kv)+k}, s{sof(kv)+k}, 16384")
        else: q = m0r(kv, 0); g.e(f"s_xor_b64 s[{q}:{q+1}], s[{q}:{q+1}], s[54:55]")
    for kv in 'K' if rem0 else 'KV':
        for k in range(3): adv(p, kv, k)
    m0(p, m0r(dl0[0][0], dl0[0][2]))
    if tline: TL(p, 0)
    else: p.waitlg(('K', 0, 3))
    def salu(g, k):
        if k == 4: g.e(f"s_add_u32 s{S_IT}, s{S_IT}, 1")
        if k == 5: g.e(f"s_cmp_eq_u32 s{S_IT}, s{S_FI}"); g.e("s_cbranch_scc1 L_flag"); g.e("L_flag_ret:")
        if k == 6: g.e(f"s_cmp_eq_u32 s{S_IT}, {clrit}"); g.e("s_cbranch_scc1 L_clr"); g.e("L_clr_ret:")
        if k == 8: g.e(f"s_cmp_lt_u32 s{S_IT}, 5")
    def x_wl(g, b): g.e(f"ds_write_b32 v{V_LW}, a{A_LS+4*b} offset:{b*256}", lg=('XW', b), xw=('X', b))
    def x_w(g, b, j): g.e(f"ds_write_b128 v{V_AW}, {vr(oreg(b,4+j),4)} offset:{(b%2)*4096+j*1024}", lg=('XW', b), xw=('X', b))
    def lz(b): return V_KDMA + 2*b
    def x_rl(g, b): g.e(f"ds_read_b64 {vr(lz(b),2)}, v{V_LR} offset:{b*256}", lg=('XL', b), xr=('X', b))
    def x_r(g, b, j): g.e(f"ds_read_b128 {vr(oreg(b,4+j),4)}, v{V_RA} offset:{(b%2)*4096+j*1024}", lg=('XR', b, j), xr=('X', b))
    def rreg(j): return oreg(j, 4)
    def h_ld(g, j, k):
        if k < 2: g.e(f"buffer_load_dwordx4 {vr(rreg(j)+4*k,4)}, v{V_H16}, s[{S_H}:{S_H+3}], {PIECE[3*j+k]} offen {hflag}", vm=('H', j))
        else: g.e(f"buffer_load_dword v{rreg(j)+8}, v{V_H4}, s[{S_H}:{S_H+3}], {PIECE[3*j+2]} offen {hflag}", vm=('H', j))
    def h_chk(j):
        r = rreg(j)
        return [f"v_max3_u32 v{r+9}, v{r}, v{r+1}, v{r+2}"] + [f"v_max3_u32 v{r+9}, v{r+9}, v{r+k}, v{r+k+1}" for k in (3, 5, 7)] + [f"v_cmp_eq_u32 vcc, -1, v{r+9}"]
    def finish_out(add, b, pk, R):
        o = oreg(b, 0)
        for h in range(2):
            q = o + 8*h
            for r in range(0, 8, 2 if pk else 1):
                if pk: add('val', 4, f"v_pk_mul_f32 {vr(q+r,2)}, {vr(q+r,2)}, {vr(V_R,2)} op_sel:[0,{R-V_R}] op_sel_hi:[1,{R-V_R}]")
                else: add('val', 4, f"v_mul_f32 v{q+r}, v{q+r}, v{R}")
            for k in range(4): add('val', 4, f"v_cvt_pk_bf16_f32 v{q+k}, v{q+2*k}, v{q+2*k+1}")
            add('val', 4, f"s_mov_b32 s51, {(b-3)*4096}")
            add('val', 8, f"v_permlane16_swap_b32 v{q}, v{q+2}")
            add('val', 8, f"v_permlane16_swap_b32 v{q+1}, v{q+3}")
            add('mem', 8, f"buffer_store_dwordx4 {vr(q,4)}, v{V_OA}, s[{S_O}:{S_O+3}], s51 offen offset:{h*64} {oflag}")
    def mkadd(out):
        def add(cls_, c, t=None, wait=None, waitv=None):
            g = G()
            if wait: g.waitlg(wait)
            elif waitv: g.waitvm(waitv)
            else: g.raw(t)
            out.append((cls_, c, g))
        return add
    def combine(b, pk):
        out = []; add = mkadd(out)
        o = oreg(b, 0); z = lz(b)
        add('post', 4, wait=('XL', b))
        add('val', 4, f"v_add_f32 v{z}, v{z}, v{z+1}")
        if b < 3: add('mem', 8, f"buffer_store_dword v{z}, v{V_H4}, s[{S_Q}:{S_Q+3}], {PIECE[3*b+2]} offen {hflag}")
        for h in range(2):
            add('post', 4, wait=('XR', b, 2*h+1))
            q = o + 8*h
            for r in range(0, 8, 2 if pk else 1):
                if pk: add('val', 4, f"v_pk_add_f32 {vr(q+r,2)}, {vr(q+r,2)}, {vr(q+16+r,2)}")
                else: add('val', 4, f"v_add_f32 v{q+r}, v{q+r}, v{q+16+r}")
            if b < 3:
                for k in range(4): add('val', 4, f"v_cvt_pk_bf16_f32 v{q+k}, v{q+2*k}, v{q+2*k+1}")
                add('mem', 8, f"buffer_store_dwordx4 {vr(q,4)}, v{V_H16}, s[{S_Q}:{S_Q+3}], {PIECE[3*b+h]} offen {hflag}")
        return out
    def recv1(b, pk):
        out = []; add = mkadd(out)
        j = b - 3; o = oreg(b, 0); r = rreg(j)
        add('post', 4, waitv=('H', j))
        for t in h_chk(j): add('val', 4, t)
        add('post', 8, ("s_nop 0" if 'c' in x7 else f"s_cbranch_vccnz L_spin{j}") + f"\nL_spin{j}_ret:")
        for k in range(8):
            if dot:
                add('val', 4, f"v_dot2c_f32_bf16 v{o+2*k}, s52, v{r+k}")
                add('val', 4, f"v_dot2c_f32_bf16 v{o+2*k+1}, s53, v{r+k}")
            else:
                t2 = r + 10 + 2*(k % 2)
                add('val', 4, f"v_lshlrev_b32 v{t2}, 16, v{r+k}")
                add('val', 4, f"v_and_b32 v{t2+1}, 0xffff0000, v{r+k}")
                if pk: add('val', 4, f"v_pk_add_f32 {vr(o+2*k,2)}, {vr(o+2*k,2)}, {vr(t2,2)}")
                else:
                    add('val', 4, f"v_add_f32 v{o+2*k}, v{o+2*k}, v{t2}")
                    add('val', 4, f"v_add_f32 v{o+2*k+1}, v{o+2*k+1}, v{t2+1}")
        return out
    def receive(b, pk):
        j = b - 3; z = lz(b); R = V_R + b % 2; r = rreg(j)
        out = [] if early[j] else recv1(b, pk)
        pc = []; add = mkadd(pc)
        add('val', 4, f"v_add_f32 v{z}, v{z}, v{r+8}")
        add('val', 8, f"v_rcp_f32 v{R}, v{z}")
        if early[j]: out = pc; add('val', 4, "s_nop 0")
        else: out = out[:7] + pc + out[7:]
        add = mkadd(out)
        add('val', 4, f"v_max3_f32 v{V_G}, v{V_G}, v{z}, v{R}")
        finish_out(add, b, pk, R)
        return out
    def render(g, S, mf, t):
        for sg in range(S.n):
            mf(g, sg)
            for it in sorted(S.mem[sg], key=lambda it: it[0] == 'dma'):
                if it[0] == 'dma': dma(g, it[1], it[2] + t, it[3], it[4], sof(it[1]))
                if it[0] == 'rv': rd_v(g, t + it[2], it[1])
                if it[0] == 'rk': rd_k(g, t + it[2], it[1])
                if it[0] == 'g': g.ext(it[1])
            for it in S.val[sg]:
                if it[0] == 'exp': sm_exp(g, it[1])
                if it[0] == 'cvt': sm_cvt(g, it[1], it[2])
                if it[0] == 'g': g.ext(it[1])
            for it in S.post[sg]:
                if it[0] == 'm0': m0(g, it[1])
                if it[0] == 'bar': g.waitvm([(kv, t + dt, q) for kv, dt in it[1] for q in range(2)]); g.e("s_barrier")
                if it[0] == 'adv': adv(g, it[1], it[2])
                if it[0] == 'wlg': g.waitlg((it[1], t + it[2], it[3]))
                if it[0] == 'salu': salu(g, it[1])
                if it[0] == 'g': g.ext(it[1])
    E0 = 6
    def softmax(S, base, pr, pace, lo=0, hi=16):
        for i in range(lo, hi):
            s = base + E0 + pace*i
            S.put('val', ('exp', i), 8, s)
            if i % 2: S.put('val', ('cvt', pr, i//2), 4, s + 1)
    NL = (PER - E0)//2
    def vreads(S, lo0, use0, cap=8, tog=True, dt=0, bar=[('V', 0)]):
        vs = []
        if bar: S.put('post', ('bar', bar), 8, lo0 - 1)
        for x in range(32):
            lo = max(lo0 + x//2, vs[-1] if vs else 0)
            vs.append(S.place('mem', ('rv', x, dt), 4, lo, max(lo, min(lo + 3, use0 + x//2 - 8)), cap))
        for f in (0, 6, 12):
            f1 = min(f + 5, 15); hi = use0 + f - 1
            S.place('post', ('wlg', 'V', dt, f1), 4, min(hi, max(vs[2*f1+1] + 6, hi - 3)), hi, cap)
        if tog:
            s0 = vs[-1] + 1
            for nu in range(8): s0 = S.place('val', ('g', txt(f"v_xor_b32 v{V_VRD+nu}, 0x8000, v{V_VRD+nu}")), 4, s0, s0 + 5)
        return vs
    def kreads(S, lo0, end, cap=8, tog=True, dt=1, bar=True):
        ks_ = []
        if bar: S.put('post', ('bar', [('K', 1)]), 8, lo0 - 1)
        for f in range(16):
            lo = max(lo0 + f, ks_[-1] if ks_ else 0)
            ks_.append(S.place('mem', ('rk', f, dt), 4, lo, lo + 3, cap))
        S.place('post', ('wlg', 'K', dt, 15), 4, min(ks_[15] + 6, end), end, cap)
        s0 = ks_[-1]
        for ks in range(4 if tog else 0): s0 = S.place('val', ('g', txt(f"v_xor_b32 v{V_KRD+ks}, 0x8000, v{V_KRD+ks}")), 4, s0, min(s0 + 3, end))
        return ks_
    def dmas(S, dl, at, cap=8, last=False):
        ds = []
        for n, (kv, t, q) in enumerate(dl):
            s0, step = at[(kv, t)]
            for j in range(4):
                lo = max(ds[-1] + step - 1 if ds else 0, s0 + step*(4*q + j))
                ds.append(S.place('mem', ('dma', kv, t, q, j), 8, lo, lo + min(3, step - 1), cap))
        for n in range(len(dl) - last):
            nx = dl[n+1] if n + 1 < len(dl) else ('V', 0, 0)
            S.place('post', ('m0', m0r(nx[0], nx[2])), 4, ds[n*4+3], ds[n*4+4] - 1 if n + 1 < len(dl) else ds[-1] + 3, cap)
            if dl[n][2] == 1:
                s0 = ds[n*4+3]
                for k in range(3): s0 = S.place('post', ('adv', dl[n][0], k), 4, s0, s0 + 3)
        assert s0 < S.n - 2
        return ds
    seq = [('qk', b) for b in range(lag0)]
    for b in range(lag0, 6): seq += [('qk', b), ('pv', b - lag0)]
    seq += [('pv', b) for b in range(6 - lag0, 5)]
    mf0 = []; start = {}
    for k, b in seq:
        start[(k, b)] = len(mf0); mf0 += [(k, b, f) for f in range(16 if k == 'qk' else 18)]
    p0 = lambda b: preg(b) if b >= 4 else oreg(b+1, 0)
    S0 = Slots(len(mf0))
    for n, (k, b) in enumerate(seq):
        if k == 'qk': softmax(S0, start[(k, b)], p0(b), 1 if seq[n+1][0] == 'qk' else 2, 0, NL if b == 5 else 16)
    for f in (7, 11, 15): S0.put('post', ('wlg', 'K', 0, f), 4, f - 5)
    use0 = start[('pv', 0)] + 2
    vs0 = vreads(S0, use0 - vb0, use0, 12)
    k0_ = kreads(S0, max(start[('qk', 5)], S0.n - 26), S0.n - 1)
    d0 = dmas(S0, dl0, {('V', 0): (-4*step0*(2-len(rem0)), step0), ('K', 1): (k1at, step0), ('V', 1): (use0 - vb0, step0), ('K', 2): (k2at, step0)}, 16)
    clears = [(f"buffer_store_dwordx4 a[252:255], v{V_H16}, s[{S_Q}:{S_Q+3}], {PIECE[3*j+k]} offen {hflag}" if k < 2 else
               f"buffer_store_dword a252, v{V_H4}, s[{S_Q}:{S_Q+3}], {PIECE[3*j+2]} offen {hflag}") for j in range(3) for k in range(3)]
    if clrit < 0 and not spread:
        s0 = d0[-9] + clr0
        for t_ in clears: s0 = S0.place('mem', ('g', txt(t_)), 8, s0 + 2, s0 + 5, 12)
        assert s0 < S0.n - 1
    assert fit >= clrit + 3
    t0 = G()
    def mfa(g, sg):
        k, b, f = mf0[sg]
        if k == 'qk': mf_qk(g, b, f)
        else: mf_pv(g, b, f, p0(b), True)
    render(t0, S0, mfa, 0)
    TL(t0, 1)
    if verbose: print("tile0 dma", d0, "vrd", vs0, "krd", k0_, "n", S0.n)
    NS = 6*PER
    S = Slots(NS, True)
    for pb in range(6): softmax(S, pb*PER, preg(pb), 2)
    dl = [(kv, t, q) for kv, t in (('V', 1), ('K', 2)) for q in range(2)]
    vs = vreads(S, 18 + vrd0, PER + 18)
    dsl = dmas(S, dl, {('V', 1): vat, ('K', 2): kat})
    ks_ = kreads(S, 5*PER + krd0, NS - 1)
    s0 = S.place('post', ('salu', 4), 4, 4*PER, 4*PER + 5)
    if spread:
        for k, at in enumerate(spread):
            s0 = S.place('mem', ('g', txt(clears[k].replace(f", {PIECE[k]} offen", ", s63 offen"))), 8, at, at + 3)
            S.place('post', ('g', txt(f"s_add_u32 s63, s63, {PS}")), 4, s0, s0 + 3)
        assert len(spread) == 3 and fit >= 4
    if clrit >= 0: S.place('post', ('salu', 6), 8, clrat, clrat + 4)
    s0 = S.place('post', ('salu', 5), 8, 5*PER + krd0 + 4, NS - 4)
    s0 = S.place('post', ('salu', 8), 4, NS - 3, NS - 1)
    if verbose: print("dma", dsl); print("vrd", vs); print("krd", ks_); print("occ", S.occ)
    def mfl(g, sg):
        pb, s = sg // PER, sg % PER
        if pb == 6: mf_pv(g, 5, s, preg(5))
        elif s < 16: mf_qk(g, pb, s)
        else: mf_pv(g, (pb-1) % 6, s - 16, preg(pb-1))
    def tile(t):
        g = G(); render(g, S, mfl, t)
        if tline:
            g.raw(tl_issue()); g.e("s_waitcnt lgkmcnt(0)"); g.e(f"s_add_u32 s3, s{S_IT}, {1+TB}"); g.raw(tl_save(0, "s3")); g.e(f"s_cmp_lt_u32 s{S_IT}, 5")
        g.e("s_cbranch_scc1 L_loop")
        return g
    SEQ = [0, 1, 2, 0, 1, 2, 3, 4, 5, 3, 4, 5]
    NF = 12*PER
    def mff(g, sg):
        pb, s = sg // PER, sg % PER
        if sg == 6*PER: TL(g, 7)
        if pb == 12: mf_pv(g, 5, s, preg(11))
        elif s < 16: mf_qk(g, SEQ[pb], s)
        else: mf_pv(g, SEQ[pb-1], s - 16, preg(pb-1))
    S7 = Slots(NF + 18)
    softmax(S7, -PER, preg(5), 2, NL, 16)
    for pb in range(12): softmax(S7, pb*PER, preg(pb), 1 if pb == 11 else 2)
    vreads(S7, 18 + vrd0, PER + 18, bar=[('V', 0)] + ([('K', 1)] if kmrg else []))
    dmas(S7, [('V', 1, 0), ('V', 1, 1)], {('V', 1): (vat[0], 4)}, last=True)
    kreads(S7, 2*PER + krd0, 3*PER - 1, bar=not kmrg)
    vreads(S7, 3*PER + 18 + vrd0, 4*PER + 18, dt=1, bar=[('V', 1)])
    kreads(S7, 8*PER + krd0, 9*PER - 1, tog=False, dt=2, bar=False)
    vreads(S7, 9*PER + 18 + vrd6, 10*PER + 18, tog=False, dt=2, bar=None)
    fl_ld = f"buffer_load_dword v{V_R}, off, s[{S_D}:{S_D+3}], s{S_FO} {hflag}"
    fl_chk = [f"v_and_b32 v{V_R}, s{S_MASK}, v{V_R}", f"v_cmp_eq_u32 vcc, 0, v{V_R}"]
    S7.place('mem', ('g', txt(fl_ld, vm=('F',))), 8, fchk - 60, fchk - 56)
    if dot: S7.place('post', ('g', mkg(lambda g: g.raw("s_mov_b32 s52, 0x3f80\ns_mov_b32 s53, 0x3f800000"))), 8, 70, 79)
    bars = {}
    PVF = [4*PER + 16, 5*PER + 16, 6*PER + 16, 10*PER + 16, 11*PER + 16, NF]
    for b in range(6):
        pv0 = PVF[b]
        S7.put('mem', ('g', mkg(x_wl, b)), 4, pv0 + 4)
        w = pv0 + 5
        ws_ = wsend if b < 3 else wstep7 if b < 4 else 2
        for j in range(4): w = S7.place('mem', ('g', mkg(x_w, b, j)), 4, max(w, pv0 + ws_*j + 6), max(w, pv0 + ws_*j + 6) + (1 if b < 5 else 0), cap7)
        bars[b] = w + bar7
    def barrier(g, b): g.waitlg([('XW', b)]); g.e("s_barrier")
    for b in range(6):
        S7.put('post', ('g', mkg(barrier, b)), 8, bars[b])
        if b == 5: break
        r = S7.place('mem', ('g', mkg(x_rl, b)), 4, bars[b] + 1, bars[b] + 1, cap7)
        for j in range(4): r = S7.place('mem', ('g', mkg(x_r, b, j)), 4, r + rstep7, r + rstep7, cap7)
    late = []
    for j in range(3):
        if rx[j] >= S7.n: late.append(j); continue
        r = rx[j]
        for k in range(3): r = S7.place('mem', ('g', mkg(h_ld, j, k)), 8, r, r + 2, cap7) + 1
    hs = [-99]
    rest = []; cur = [0]
    def sched(fn, b, lo):
        c = max(cur[0], lo); items = fn(b, False); prevc = None
        for n, (c_, cost_, g) in enumerate(items):
            order = {'mem': 0, 'val': 1, 'post': 2}
            if fn is combine and b < 3 and c_ == 'mem':
                lo_ = max(c + 1, hs[-1] + hstep); hs.append(S7.place('mem', ('g', g), 8, lo_, lo_ + 3, cap7)); continue
            if prevc is not None and order[c_] < order[prevc]: c += 1
            while c < S7.n and S7.occ[c] + cost_ > cap7: c += 1
            if c >= S7.n: rest.extend(x[2] for x in (items[n:] if n else fn(b, True))); break
            S7.put(c_, ('g', g), cost_, c); prevc = c_
        cur[0] = c + 1
        if verbose: print(fn.__name__, b, "ends at slot", c)
    def flagchk(b, pk):
        out = []; add = mkadd(out)
        add('post', 4, waitv=('F',))
        for t_ in fl_chk: add('val', 4, t_)
        add('post', 8, "s_cbranch_vccnz L_spinf\nL_spinf_ret:")
        return out
    sched(flagchk, 0, fchk)
    for j in range(3):
        if early[j]:
            c0 = cur[0]; sched(recv1, 3+j, early[j]); assert cur[0] <= PVF[3+j] + 9 and early[j] > rx[j] + 6 and early[j] >= (8+j)*PER + 3; cur[0] = c0
    for b in range(5):
        sched(combine, b, max(bars[b] + 1 + rdw7, PVF[b] + 14))
        if b < 3: assert cur[0] <= rx[b]
        if b >= 3: sched(receive, b, rx[b-3] + hold[b-3])
    t7 = G(); render(t7, S7, mff, 6)
    if verbose: print("occ7", S7.occ, "rest", len(rest), "bars", bars, "hs", hs)
    TL(t7, 8)
    x_rl(t7, 5)
    for j in range(4): x_r(t7, 5, j)
    for j in late:
        for k in range(3): h_ld(t7, j, k)
    for g in rest: t7.ext(g)
    if not rest: t7.e("s_nop 4")
    for c_, cost_, g in combine(5, True) + receive(5, True): t7.ext(g)
    if 'h' in x7: t7.L = [x for x in t7.L if not (x[0].startswith('buffer_store') and 's[8:11]' in x[0])]
    if 'd' in x7: t7.L = [x for x in t7.L if not x[0].startswith('buffer_store_dword ')]
    if 'n' in x7: t7.L = [(x[0] + ' nt' if x[0].startswith('buffer_store') and 's[8:11]' in x[0] else x[0], x[1]) for x in t7.L]
    if 'u' in x7: t7.L = [(x[0].replace(f"v{V_OA}, s[20:23]", f"v{V_H16}, s[20:23]").replace("offset:64 ", "offset:1024 ").replace("s_mov_b32 s51,", "s_add_u32 s51, s60,"), x[1]) for x in t7.L]
    if 'o' in x7: t7.L = [x for x in t7.L if not (x[0].startswith('buffer_store') and 's[20:23]' in x[0])]
    if 'l' in x7: t7.L = [x for x in t7.L if not ('H' in x[1].get('vm', ()) or 'H' in x[1].get('waitvm', ()))]
    if 'w' in x7: t7.L = [x for x in t7.L if not ('H' in x[1].get('waitvm', ()))]
    if 'f' in x7: t7.L = [x for x in t7.L if not ('F' in x[1].get('vm', ()) or 'F' in x[1].get('waitvm', ()) or 'nz L_spinf' in x[0])]
    t7.raw(f"""
s_mov_b32 s51, 0x{f2u(thresh if not force_fb else 0.0):08x}
v_cmp_nge_f32 vcc, s51, v{V_G}
{'' if skip else 's_cbranch_vccnz L_fallback'}
L_fin:
""")
    TL(t7, 9)
    if stamps:
        t7.e("s_waitcnt vmcnt(0)")
        TL(t7, 10)
        if cnt: t7.raw(f"s_add_u32 s88, s84, s{S_CNT}\ns_addc_u32 s89, s85, 0")
        t7.raw(stamp_end(4, 2, S_W))
        if tline: t7.raw(tl_store(0, 2))
    t7.e("L_end:")
    t7.e("s_endpgm")
    ol = G()
    ol.raw(f"""
L_flag:
{'buffer_store_byte' if fbyte else 'buffer_atomic_or'} v{V_X}, v{V_X+1}, s[{S_D}:{S_D+3}], 0 offen {hflag if fbyte else 'sc1'}
s_branch L_flag_ret
""")
    if clrit >= 0: ol.raw('L_clr:\n' + '\n'.join(clears) + '\ns_branch L_clr_ret')
    for nm, ld, chk in [('f', [fl_ld], fl_chk)] + [(str(j), [mkg(h_ld, j, k).L[0][0] for k in range(3)], h_chk(j)) for j in range(3)]:
        ol.e(f"L_spin{nm}:")
        for t_ in ld: ol.e(t_)
        ol.e(f"s_add_u32 s{S_CNT}, s{S_CNT}, 1")
        ol.e("s_waitcnt vmcnt(0)")
        for t_ in chk: ol.e(t_)
        ol.raw(f"""
s_cbranch_vccz L_spin{nm}_ret
s_cmp_lt_u32 s{S_CNT}, {spin}
s_cbranch_scc1 L_spin{nm}
v_mov_b32 v{V_G}, 0x7f800000
s_branch L_spin{nm}_ret
""")
    fb = G()
    M = V_P + 8
    fb.raw(f"""
L_fallback:
s_waitcnt vmcnt(0) lgkmcnt(0)
s_lshl_b32 s51, s50, 14
s_add_u32 s48, s48, s51
s_lshl_b32 s51, s49, 7
s_add_u32 s{S_K}, s6, s{S_GRP}
s_addc_u32 s{S_K+1}, s7, 0
s_add_u32 s{S_V}, s40, s{S_GRP}
s_addc_u32 s{S_V+1}, s41, 0
s_mov_b32 s{S_K+2}, 0x80000
s_mov_b32 s{S_V+2}, 0x80000
""")
    addr_dma(fb, 48); addr_v(fb, 48, 51)
    for q in range(4): fb.e(f"s_add_u32 s{S_M00+q}, s48, {q*4096}")
    for b in range(3): fb.e(f"v_mov_b32 v{M+b}, 0xff800000")
    def fb_init():
        for q in range(4): fb.e(f"s_mov_b32 s{S_OFF+q}, {q*4096}")
        fb.e(f"s_mov_b32 s{S_IT}, 0")
    def fb_load(kv):
        for q in range(4):
            m0(fb, S_M00 + q); fb.e("s_nop 0")
            for j in range(4): dma(fb, kv, 0, q, j, S_OFF)
        fb.e("s_waitcnt vmcnt(0)")
        if kv == 'K':
            for f in range(16): rd_k(fb, 0, f)
        else:
            for x in range(16, 32): rd_v(fb, 0, x)
        fb.e("s_waitcnt lgkmcnt(0)")
    def fb_next(lbl):
        for q in range(4): fb.e(f"s_add_u32 s{S_OFF+q}, s{S_OFF+q}, 16384")
        salu(fb, 4)
        fb.e(f"s_cmp_lt_u32 s{S_IT}, 32")
        fb.e(f"s_cbranch_scc1 {lbl}")
    fb_init()
    fb.e("L_fb1:")
    fb_load('K')
    for b in range(3):
        for f in range(16): mf_qk(fb, 3+b, f)
        fb.e("s_nop 9")
        for i in range(0, 16, 2): fb.e(f"v_max3_f32 v{M+b}, v{V_S+i}, v{V_S+i+1}, v{M+b}")
    fb_next("L_fb1")
    for b in range(3):
        for sw in (32, 16):
            fb.raw(f"v_mov_b32 v{T}, v{M+b}\ns_nop 1\nv_permlane{sw}_swap_b32 v{T}, v{M+b}\ns_nop 1\nv_max_f32 v{M+b}, v{T}, v{M+b}")
        for r in range(16): fb.e(f"v_mov_b32 v{oreg(3+b,0)+r}, 0")
        for r in range(4): fb.e(f"v_accvgpr_write_b32 a{A_LS+12+4*b+r}, 0")
    fb_init()
    fb.e("L_fb2:")
    fb_load('K'); fb_load('V')
    for b in range(3):
        for f in range(16): mf_qk(fb, 3+b, f)
        fb.e("s_nop 9")
        for i in range(16): fb.e(f"v_sub_f32 v{V_S+i}, v{V_S+i}, v{M+b}")
        for i in range(16): sm_exp(fb, i)
        fb.e("s_nop 0")
        for k in range(8): sm_cvt(fb, V_P, k)
        fb.e("s_nop 1")
        for s in [0, 1] + list(range(10, 18)): mf_pv(fb, 3+b, s, V_P)
    fb_next("L_fb2")
    fb.e("s_nop 9")
    for b in range(3, 6):
        fb.raw(f"v_accvgpr_read_b32 v{V_R}, a{A_LS+4*b}\ns_nop 0\nv_rcp_f32 v{V_R}, v{V_R}\ns_nop 0")
        out = []; finish_out(mkadd(out), b, False, V_R)
        for c_, cost_, g in out: fb.ext(g)
    fb.e("s_branch L_fin")
    return dict(p=p, t0=t0, tile=tile, t7=t7, ol=ol, fb=fb, verbose=verbose, skip=skip, align=align)

def tagvm(Lst): return [(t, ({**m, 'vm': ('other',)} if t.startswith('buffer_') and 'vm' not in m else m)) for t, m in Lst]
def xcheck(seg, lines):
    NW = {'K': 8, 'V': 8, 'Q': 12, 'X': 5}; NR = {'K': 16, 'V': 32, 'Q': 24, 'X': 5}
    vm, lg, nw, nr, pub, rel = [], [], {}, {}, set(), set()
    for (t0, m), t in zip(seg, lines):
        if t.startswith('s_waitcnt'):
            a = re.search(r'vmcnt\((\d+)\)', t); b = re.search(r'lgkmcnt\((\d+)\)', t)
            if a: n = int(a.group(1)); vm = vm[max(0, len(vm)-n):] if n else []
            if b: n = int(b.group(1)); lg = lg[max(0, len(lg)-n):] if n else []
        if t.startswith('s_barrier'):
            pub |= {k for k, c in nw.items() if c == NW[k[0]] and ('w', k) not in vm + lg}
            rel |= {k for k, c in nr.items() if c == NR[k[0]] and ('r', k) not in lg}
        e = None
        if 'xr' in m:
            k = m['xr']; assert k in pub or (k[1] == 8 and (k[0], 6) in pub), ('read before publish', t, k); nr[k] = nr.get(k, 0) + 1; e = ('r', k)
        if 'xw' in m:
            k = m['xw']; nw[k] = nw.get(k, 0) + 1; e = ('w', k)
            need = []
            if k[0] in 'KV' and k[1] >= 2: need = [(k[0], k[1]-2)]
            if k == ('V', 1): need = [('Q', 0)]
            if k[0] == 'X': need = [('K', 7), ('Q', 0)] + ([('X', k[1]-2)] if k[1] >= 2 else [])
            assert all(x in rel for x in need), ('write before release', t, k)
        if t.startswith('buffer_'): vm.append(e)
        if t.startswith('ds_'): lg.append(e)
    assert ('K', 8) in rel and ('V', 8) in rel
def finish(d):
    p, t0, t7, fb, ol = [tagvm(d[k].L) for k in ('p', 't0', 't7', 'fb', 'ol')]
    bodies = [tagvm(d['tile'](t).L) for t in range(1, 6)]
    head = p + t0
    trace = head + sum(bodies, []) + t7
    res = resolve(trace)
    nb = len(bodies[0]); n0 = len(head)
    rb = []
    for k in range(nb):
        c = [res[n0 + it*nb + k] for it in range(5)]
        rb.append(None if c[0] is None else (c[0][0], min(x[1] for x in c)))
        if c[0] is not None and len(set(c[1:])) != 1: print("wait differs", c)
    out_pre = emit(head, res[:n0]); out_body = emit(bodies[0], rb); out_tail = emit(t7, res[n0 + 5*nb:])
    out_fb = emit(fb, resolve(fb)); out_ol = [t for t, m in ol]
    sk = d['skip']
    assert [l for l in out_body if l.startswith(('s_add', 's_xor', 's_cmp'))][-1].startswith('s_cmp_lt_u32')
    nbad = 0 if sk else readiness(head + bodies[0] + bodies[1] + t7, out_pre + out_body + out_body + out_tail, 'main')
    nbad += readiness(fb, out_fb, 'fb') + readiness(ol, out_ol, 'ol')
    xcheck(trace, out_pre + out_body*5 + out_tail)
    if d['verbose']:
        print("predicted cycles tile0/loop/tile7", predict(out_pre), predict(out_body), predict(out_tail)); print([l for l in out_body if 'waitcnt' in l])
    if 'd' in sk: out_body = [l for l in out_body if not l.startswith('buffer_load')]
    if 'b' in sk: out_body = [l for l in out_body if not l.startswith('s_barrier')]
    if not sk: nbad += hazard.check(out_pre + out_body + out_body + out_tail + out_ol + out_fb, 'main', timed=True)
    assert nbad == 0 or sk
    lines = out_pre + ([f".p2align {d['align']}"] if d['align'] else []) + ["L_loop:"] + out_body + out_tail + out_ol + out_fb
    txt = "\n".join(l if l.endswith(':') or l.startswith('.') else "    " + l for l in lines)
    return wrap(txt, 256, 256, 163840, nsgpr=96)
def make(**kw): return finish(gen(**kw))

if __name__ == "__main__":
    print(build(make(verbose=True, spread=(65,85,150), fit=4, dot=True), "h2"))
```

```python
import re
def regs(tok):
    tok = tok.strip()
    tok = tok.lstrip('-')
    if tok.startswith('abs('): tok = tok[4:-1]
    if tok.startswith('|'): tok = tok.strip('|')
    m = re.fullmatch(r'([vas])\[(\d+):(\d+)\]', tok)
    if m: return {(m.group(1), i) for i in range(int(m.group(2)), int(m.group(3))+1)}
    m = re.fullmatch(r'([vas])(\d+)', tok)
    if m: return {(m.group(1), int(m.group(2)))}
    if tok == 'vcc': return {('s', 106), ('s', 107)}
    if tok == 'm0': return {('m', 0)}
    if tok == 'exec': return {('e', 0)}
    return set()
TRANS = ('v_exp_f32', 'v_log_f32', 'v_rcp_f32', 'v_rsq_f32', 'v_sqrt_f32')
class I:
    def __init__(s, text):
        s.text = text
        t = text.split(';')[0].strip()
        s.op = t.split()[0]
        rest = t[len(s.op):].strip()
        ops = [x.strip() for x in rest.split(',')] if rest else []
        if ops:
            parts = ops[-1].split()
            ops[-1] = parts[0] if parts else ''
            s.mods = parts[1:]
        else: s.mods = []
        s.ops = ops
        op = s.op
        s.kind = 'other'; s.w = set(); s.r = set(); s.a = set(); s.b = set(); s.c = set(); s.states = 1
        if op == 's_nop': s.states = int(ops[0], 0) + 1
        elif op.startswith('v_mfma'):
            s.kind = 'mfma'; s.w = regs(ops[0]); s.a = regs(ops[1]); s.b = regs(ops[2]); s.c = regs(ops[3]); s.r = s.a | s.b | s.c
            s.passes = 8 if '32x32x16' in op or '16x16x4_f32' in op else 4
        elif op.startswith('v_permlane') and 'swap' in op:
            s.kind = 'valu'; s.w = regs(ops[0]) | regs(ops[1]); s.r = set(s.w)
        elif op.startswith('v_cmp'):
            s.kind = 'valu'; s.w = regs(ops[0]); s.r = set().union(*[regs(x) for x in ops[1:]])
        elif op.startswith('v_'):
            s.kind = 'valu'; s.w = regs(ops[0]); s.r = set().union(*[regs(x) for x in ops[1:]]) if len(ops) > 1 else set()
            if op.startswith('v_fmac') or op.startswith('v_dot2c') or op.startswith('v_pk_fmac'): s.r |= s.w
        elif op.startswith('ds_read'):
            s.kind = 'ds'; s.w = regs(ops[0]); s.r = regs(ops[1])
        elif op.startswith('ds_write'):
            s.kind = 'ds'; s.r = set().union(*[regs(x) for x in ops])
            if 'addtid' in op: s.r |= {('m', 0)}
        elif op.startswith('buffer_load'):
            s.kind = 'vmem'
            if 'lds' in s.mods:
                s.r = set().union(*[regs(x) for x in ops]) | {('m', 0)}
            else:
                s.w = regs(ops[0]); s.r = set().union(*[regs(x) for x in ops[1:]])
        elif op.startswith(('buffer_store', 'buffer_atomic')):
            s.kind = 'vmem'; s.r = set().union(*[regs(x) for x in ops]); s.data = regs(ops[0])
        elif op.startswith('s_') and ops and not op.startswith(('s_cmp', 's_cbranch', 's_branch', 's_waitcnt', 's_barrier', 's_setprio', 's_sleep')):
            s.kind = 'salu'; s.w = regs(ops[0]); s.r = set().union(*[regs(x) for x in ops[1:]]) if len(ops) > 1 else set()
def check(lines, name='', timed=False):
    ins = []
    for l in lines:
        t = l.split(';')[0].strip()
        if not t or t.endswith(':') or t.startswith('.'): continue
        ins.append(I(l))
    bad = 0
    for i, p in enumerate(ins):
        t = 0
        lastm = (0, p.passes) if p.kind == 'mfma' else None
        for j in range(i+1, min(len(ins), i+24)):
            c = ins[j]
            t += ins[j-1].states
            if c.kind == 'mfma':
                if timed and lastm: t = max(t, lastm[0] + lastm[1])
                lastm = (t, c.passes)
            dist = t - p.states
            need = 0; why = ''
            def rq(n, w):
                nonlocal need, why
                if n > need: need = n; why = w
            if p.kind == 'mfma':
                big = (12 if p.passes == 8 else 8) + (1 if timed else 0)
                if c.kind == 'mfma':
                    if p.w & (c.a | c.b): rq(big, 'mfma D->A/B')
                    if p.w & c.c and not (p.w == c.c and p.passes == c.passes): rq(big-2, 'mfma D->C partial')
                    if p.w & c.w and not (p.w == c.c): rq(0, '')
                elif c.kind in ('valu', 'ds', 'vmem'):
                    if p.w & (c.r | c.w): rq(big, 'mfma D->valu/mem')
                    if c.kind == 'valu' and p.c & c.w: rq(7 if p.passes == 8 else 3, 'mfma C WAR')
            if p.kind == 'valu':
                vw = {x for x in p.w if x[0] in 'va'}; sw = {x for x in p.w if x[0] == 's'}
                if c.kind == 'mfma' and vw & c.r: rq(2, 'valu->mfma')
                if p.op.startswith('v_dot') and vw & (c.r | c.w): rq(3, 'dot->any')
                if c.kind == 'valu':
                    if p.op.startswith(TRANS) and not c.op.startswith(TRANS) and vw & c.r: rq(1, 'trans->valu')
                    if c.op.startswith('v_permlane') and vw & c.r: rq(2, 'valu->permlane')
                    if c.op.startswith(('v_readfirstlane', 'v_readlane')) and vw & c.r: rq(1, 'valu->readlane')
                    if 'dpp' in c.op and vw & c.r: rq(2, 'valu->dpp')
                    if sw & c.r: rq(2, 'valu sgpr->valu')
                    if c.op.startswith('v_cndmask') and len(c.ops) == 4 and sw & regs(c.ops[3]): rq(2, 'vcc->cndmask')
                if c.kind == 'vmem' and sw & c.r: rq(5, 'valu sgpr->vmem')
            if p.kind == 'salu' and ('m', 0) in p.w and c.kind in ('vmem', 'ds') and ('m', 0) in c.r: rq(1, 'm0->dma')
            if p.kind == 'vmem' and p.op.startswith('buffer_store') and ('x4' in p.op or 'x3' in p.op) and p.data & c.w: rq(2, 'store data WAR')
            if dist < need:
                bad += 1
                print(f"HAZARD[{name}] {why}: need {need} have {dist}\n    {p.text.strip()}\n    {c.text.strip()}")
    return bad
```

```python
from gen_h2 import *
k0 = dict(spread=(73,87,150), fit=4, dot=True)
build(make(**k0), "t1")
build(make(**k0, fodd=3, warm='dh'), "t2")
build(make(**k0, fodd=3, hstep=22, rx=(362,372,382)), "t3")
build(make(**k0, fodd=3, kmrg=True, lag0=4), "t4")
```

```python
import sys, re, struct
from asmlib import *
from gcore import *
import hazard
from gen_a3 import Slots
SCALE = 1.4426950408889634 / (128 ** 0.5)
def bf(x): u = f2u(x); return (u + 0x7fff + ((u >> 16) & 1)) >> 16
CDOT = bf(SCALE) | bf(SCALE - struct.unpack('<f', struct.pack('<I', bf(SCALE) << 16))[0]) << 16
A_Q, A_K, A_V, A_LS, A_ONE = 0, 96, 160, 224, 248
L = 1
V_AW, V_RA, V_H16, V_H4, V_LW, V_LR, V_OA, V_G = 2, 3, 4, 5, 6, 7, 8, 9
V_R = 10
V_KDMA = 12
V_VDMA = 16
V_X = 18
V_KRD = 20
V_VRD = 24
V_O = 32
V_S = 224
V_P = 240
T = V_S
V_QL, V_QW, V_QR = V_P + 8, V_P + 9, V_P + 10
S_Q, S_K, S_V, S_O, S_H, S_D = 8, 12, 16, 20, 32, 44
S_OFF, S_M0, S_M00 = 24, 28, 60
S_C, S_IT, S_FI = 36, 38, 39
S_RX, S_TX, S_CNT, S_GRP, S_MASK, S_W = 56, 64, 67, 72, 73, 74
S_FO = 59
PIECE = ['0', 's56', 's57', 's58', 's64', 's65', 's66', 's61', 's62']
QS = 114688
LZONE = 131072
HOFF = 0x200000
MF = "v_mfma_f32_16x16x32_bf16"
NUS = [4, 5, 6, 7, 0, 1, 2, 3]
PER = 34
def oreg(b, nu): return V_O + (b*8+nu)*4
def qreg(b, ks): return ar(A_Q + (b*4+ks)*4, 4)
def kreg(kb, ks): return ar(A_K + (kb*4+ks)*4, 4)
def vreg(nu, u): return A_V + (nu*2+u)*4

def gen(oflag='sc0 sc1 nt', hflag='sc0 sc1', stamps=False, thresh=2.0**40, skip='', vat=(3, 4), kat=(100, 4), k1at=0, k2at=0, vrd0=16, krd0=0, vrd6=8, verbose=False, tline=False,
        pre='q012345 k0', mid='k1', post='v0 v1', lag0=5, step0=4, cap7=12, force_fb=False, pst=False, wstep7=4, wsend=2, rstep7=1, bar7=4, rdw7=8,
        rx=(320, 345, 370), hold=(0, 0, 0), xmap=False, spin=3000, x7='', align=6, clr0=0, qdot=False, nq1=6, q2at=8, q2cap=32, qb2=8, v1at=0, clrit=-1, clrat=72, spread=None, GB=10, hstep=16, kmrg=False, fchk=165, early=(0, 0, 0), fbyte=False, fodd=0, warm='', fit=3, dot=False, cnt=False, vb0=22, pf=0, pfat=1, pfs=7):
    PS = 1024 << GB
    def m0(g, r): g.e(f"s_mov_b32 m0, s{r}")
    def m0r(kv, q): return S_M0 + 2*(kv == 'V') + q
    def sof(kv): return S_OFF + 2*(kv == 'V')
    def dma(g, kv, t, q, j, so):
        if kv == 'K': g.e(f"buffer_load_dwordx4 v{V_KDMA+j}, s[{S_K}:{S_K+3}], s{so+q} offen offset:{j*1024} lds", vm=('K', t, q), xw=('K', t))
        else: g.e(f"buffer_load_dwordx4 v{V_VDMA+j%2}, s[{S_V}:{S_V+3}], s{so+q} offen offset:{j*1024} lds", vm=('V', t, q), xw=('V', t))
    def rd_k(g, t, f):
        kb, ks = f//4, f % 4
        g.e(f"ds_read_b128 {kreg(kb,ks)}, v{V_KRD+ks} offset:{kb*4096}", lg=('K', t, f), xr=('K', t))
    def rd_v(g, t, x):
        f, e2 = x//2, x % 2
        nu, u = NUS[f//2], f % 2
        g.e(f"ds_read_b64_tr_b16 {ar(vreg(nu,u)+e2*2,2)}, v{V_VRD+nu} offset:{(2*u+e2)*4096}", lg=('V', t, f), xr=('V', t))
    def mf_qk(g, b, f):
        kb, ks = f//4, f % 4
        d = vr(V_S + kb*4, 4)
        g.e(f"{MF} {d}, {kreg(kb,ks)}, {qreg(b,ks)}, {d if ks else 0}")
    def mf_pv(g, b, s, pr, first=False):
        u = s % 2
        if s < 2: o, a_ = ar(A_LS + b*4, 4), ar(A_ONE, 4)
        else: nu = NUS[s//2 - 1]; o, a_ = vr(oreg(b, nu), 4), ar(vreg(nu, u), 4)
        g.e(f"{MF} {o}, {a_}, {vr(pr + u*4, 4)}, {0 if first and u == 0 else o}")
    def sm_exp(g, i): g.e(f"v_exp_f32 v{V_S+i}, v{V_S+i}")
    def sm_cvt(g, pr, k): g.e(f"v_cvt_pk_bf16_f32 v{pr+k}, v{V_S+2*k}, v{V_S+2*k+1}")
    def preg(b): return V_P + (b % 2)*8
    TB = 5 if pst else 0
    def TL(g, idx):
        idx += TB
        if tline and idx >= 0: g.raw(tl_issue()); g.e("s_waitcnt lgkmcnt(0)"); g.raw(tl_save(0, idx))
    def mkg(f, *a):
        g = G(); f(g, *a); return g
    def txt(t, **m):
        g = G(); g.e(t, **m); return g
    def addr_dma(g, kbase):
        g.raw(f"""
v_lshrrev_b32 v{T}, 4, v{L}              ; g
v_and_b32 v{T+1}, 15, v{L}               ; i
v_xor_b32 v{T+2}, v{T+1}, v{T}           ; i ^ g
v_lshlrev_b32 v{T+3}, 8, v{T}            ; g*256
v_lshl_add_u32 v{V_KDMA}, v{T+2}, 4, v{T+3}
""")
        for j in range(1, 4): g.e(f"v_xor_b32 v{V_KDMA+j}, {j<<6}, v{V_KDMA}")
        g.raw(f"""
v_lshlrev_b32 v{T+5}, 8, v{T+1}
v_lshl_add_u32 v{T+5}, v{T+2}, 4, v{T+5}
v_add_u32 v{V_KRD}, s{kbase}, v{T+5}
v_lshlrev_b32 v{T+2}, 1, v{T}
v_xor_b32 v{T+2}, v{T+1}, v{T+2}         ; i ^ (g<<1)
v_lshl_add_u32 v{V_VDMA}, v{T+2}, 4, v{T+3}
v_xor_b32 v{V_VDMA+1}, 0x80, v{V_VDMA}
""")
        for ks in range(1, 4): g.e(f"v_xor_b32 v{V_KRD+ks}, {ks<<6}, v{V_KRD}")
    def addr_v(g, vbase, cx):
        g.raw(f"""
v_lshrrev_b32 v{T+2}, 2, v{L}            ; row = 4g + (i>>2)
v_and_b32 v{T+3}, 7, v{T+2}
v_lshlrev_b32 v{T+3}, 5, v{T+3}
v_xor_b32 v{T+3}, s{cx}, v{T+3}
v_lshl_add_u32 v{T+3}, v{T+2}, 8, v{T+3}
v_and_b32 v{T+2}, 3, v{L}
v_lshl_add_u32 v{T+3}, v{T+2}, 3, v{T+3}
v_add_u32 v{V_VRD}, s{vbase}, v{T+3}
""")
        for nu in range(1, 8): g.e(f"v_xor_b32 v{V_VRD+nu}, {nu<<5}, v{V_VRD}")
    p = G()
    p.e("s_cmp_ge_u32 s2, 256")
    p.e("s_cbranch_scc1 L_end")
    if stamps: p.raw(stamp_start())
    p.raw(f"""
s_load_dwordx4 s[4:7], s[0:1], 0
s_load_dwordx4 s[40:43], s[0:1], 16
s_load_dwordx4 s[56:59], s[0:1], 32
v_lshrrev_b32 v{T}, 6, v0
v_and_b32 v{L}, 63, v0
v_readfirstlane_b32 s{S_W}, v{T}
""")
    if xmap: p.raw("""
s_lshr_b32 s44, s2, 4
s_xor_b32 s44, s44, s2
s_and_b32 s44, s44, 1
s_mul_i32 s44, s44, 17
s_xor_b32 s2, s2, s44
""")
    p.raw(f"""
s_and_b32 s44, s2, 7
s_lshr_b32 s45, s2, 5
s_lshl_b32 s44, s44, 3
s_add_u32 s44, s44, s45          ; group
s_lshl_b32 s{S_GRP}, s44, 19
s_bfe_u32 s45, s2, 0x10003
s_lshl_b32 s44, s44, 1
s_add_u32 s44, s44, s45
s_mul_i32 s46, s44, 49152
s_bfe_u32 s47, s2, 0x10004
s_mul_i32 s52, s47, 12288
s_sub_u32 s53, 12288, s52
s_lshr_b32 s49, s{S_W}, 1
s_and_b32 s50, s{S_W}, 1           ; head
s_lshl_b32 s47, s47, 1
s_add_u32 s47, s47, s49
s_lshl_b32 s47, s47, 17
s_add_u32 s45, s47, s{S_GRP}       ; k / v offset
s_lshl_b32 s48, s49, 16
s_lshl_b32 s{S_OFF}, s50, 13
s_add_u32 s{S_OFF+1}, s{S_OFF}, 4096
s_mov_b64 s[{S_OFF+2}:{S_OFF+3}], s[{S_OFF}:{S_OFF+1}]
s_add_u32 s{S_M0}, s48, s{S_OFF}
s_add_u32 s{S_M0+1}, s{S_M0}, 4096
s_add_u32 s{S_M0+2}, s{S_M0}, 16384
s_add_u32 s{S_M0+3}, s{S_M0}, 20480
s_lshl_b32 s54, s{S_W}, 6
s_lshl_b32 s55, s{S_W}, 10
""")
    addr_dma(p, 48)
    p.raw(f"""
v_xor_b32 v{V_QL}, s54, v{V_KDMA}
v_add_u32 v{V_QL}, s55, v{V_QL}
s_mov_b32 s{S_Q+2}, 49152
s_mov_b32 s{S_Q+3}, 0x20000
s_mov_b32 s{S_K+2}, 0x20000
s_mov_b32 s{S_K+3}, 0x20000
s_mov_b32 s{S_V+2}, 0x20000
s_mov_b32 s{S_V+3}, 0x20000
s_waitcnt lgkmcnt(0)
s_add_u32 s{S_Q}, s4, s46
s_addc_u32 s{S_Q+1}, s5, 0
s_add_u32 s{S_K}, s6, s45
s_addc_u32 s{S_K+1}, s7, 0
s_add_u32 s{S_V}, s40, s45
s_addc_u32 s{S_V+1}, s41, 0
""")
    def prefetch():
        p.raw(f'''
s_getpc_b64 s[92:93]
L_pc:
s_lshr_b32 s94, s2, 3
s_lshl_b32 s94, s94, 2
s_add_u32 s94, s94, s{S_W}
s_mul_i32 s94, s94, {pf << pfs}
s_min_u32 s94, s94, L_end-L_pc-{(pf-1) << pfs}
s_add_u32 s92, s92, s94
s_addc_u32 s93, s93, 0
''')
        for k in range(pf): p.e(f"s_load_dword s{[95, 94, 75, 76][k]}, s[92:93], {k << pfs}")
    if pf and pfat == 0: prefetch()
    TL(p, -5)
    def qland(c): return oreg(1, 2) + c*4 if c < 6 else V_O + (c-6)*4
    def toks(s):
        out = []
        for tk in s.split():
            if tk[0] == 'q':
                for b in [int(c) for c in tk[1:]]:
                    for h in range(2):
                        g = G(); g.e(f"s_add_u32 s51, s{52 + b//3}, {h*24576 + (b%3)*4096}")
                        g.e(f"buffer_load_dwordx4 {vr(qland(b*2+h),4)}, v{V_QL}, s[{S_Q}:{S_Q+3}], s51 offen", vm=('Q', b*2+h)); out.append(g)
            else:
                kv, pp = tk[0].upper(), int(tk[1])
                for j in range(4):
                    g = G()
                    if j == 0: m0(g, m0r(kv, pp)); g.e("s_nop 0")
                    dma(g, kv, 0, pp, j, sof(kv)); out.append(g)
        return out
    for g in toks(pre): p.ext(g)
    if pf and pfat == 1: prefetch()
    p.raw(f"""
s_mul_i32 s3, s50, 24576
s_add_u32 s46, s46, s3
s_add_u32 s46, s46, s53
s_add_u32 s{S_O}, s42, s46
s_addc_u32 s{S_O+1}, s43, 0
s_mov_b32 s{S_O+2}, 12288
s_mov_b32 s{S_O+3}, 0x20000
s_lshl_b32 s51, s44, 1
s_bfe_u32 s4, s2, 0x10004
s_add_u32 s51, s51, s4
s_lshl_b32 s51, s51, 2
s_add_u32 s51, s51, s{S_W}
s_lshr_b32 s4, s51, {GB}
s_mul_i32 s4, s4, {8*PS}
s_lshl_b32 s51, s51, 10
s_add_u32 s51, s51, s4
s_add_u32 s51, s51, 0x{HOFF:x}
s_add_u32 s4, s58, s51
s_addc_u32 s5, s59, 0
s_xor_b32 s51, s51, 0x1000
s_add_u32 s{S_H}, s58, s51
s_addc_u32 s{S_H+1}, s59, 0
s_mov_b32 s{S_H+2}, {8*PS+1024}
s_mov_b32 s{S_H+3}, 0x20000
s_mov_b32 s{S_D}, s56
s_mov_b32 s{S_D+1}, s57
s_mov_b32 s{S_D+2}, 256
s_mov_b32 s{S_D+3}, 0x20000
s_and_b32 s{S_FO}, s2, 0xfc
s_and_b32 s{S_MASK}, s2, 3
s_lshl_b32 s{S_MASK}, s{S_MASK}, 3
s_lshl_b32 s{S_MASK}, 1, s{S_MASK}
v_mov_b32 v{V_X}, {1 if fbyte else f's{S_MASK}'}
v_lshlrev_b32 v{V_X+1}, 8, v{L}
v_add_u32 v{V_X+1}, {'s2' if fbyte else f's{S_FO}'}, v{V_X+1}
{f's_load_dword s75, s[{S_D}:{S_D+1}], 0' if 'd' in warm else ''}
{f's_load_dword s76, s[4:5], 0' if 'h' in warm else ''}
{f's_load_dword s77, s[{S_O}:{S_O+1}], 0' if 'o' in warm else ''}
s_xor_b32 s{S_FO}, s{S_FO}, 16
s_cmp_eq_u32 s{S_W}, 0
s_cselect_b32 s{S_FI}, {fit}, 99
{f's_bfe_u32 s51, s2, 0x{0x10000+fodd:x}' if fodd else ''}
{f's_add_u32 s{S_FI}, s{S_FI}, s51' if fodd else ''}
s_mov_b32 s{S_IT}, 0
s_mov_b32 s{S_CNT}, 0
s_mov_b32 s{S_C}, 0x{(CDOT if qdot else f2u(SCALE)):08x}
s_mov_b32 s{S_C+1}, 0x{f2u(SCALE):08x}
s_add_u32 s{S_M00}, s48, 16384
s_lshl_b32 s{S_M00+1}, s49, 7
""")
    addr_v(p, S_M00, S_M00+1)
    p.raw(f"""
v_lshlrev_b32 v{V_H16}, 4, v{L}
v_lshlrev_b32 v{V_H4}, 2, v{L}
v_lshl_add_u32 v{V_H4}, s{S_W}, 8, v{V_H4}
s_lshl_b32 s51, s50, 13
s_add_u32 s51, s51, s48
s_add_u32 s51, s51, 0x8000
v_add_u32 v{V_AW}, s51, v{V_H16}
v_xor_b32 v{V_RA}, 0x10000, v{V_AW}
s_add_u32 s51, s55, {QS}
v_add_u32 v{V_QW}, s51, v{V_H16}
s_lshl_b32 s51, s50, 3
s_add_u32 s51, s51, {LZONE}
v_lshl_add_u32 v{V_LR}, v{T+1}, 4, s51
v_lshl_add_u32 v{V_LW}, s49, 2, v{V_LR}
v_lshlrev_b32 v{V_OA}, 8, v{T+1}
v_and_b32 v{T+3}, 16, v{L}
v_lshl_add_u32 v{V_OA}, v{T+3}, 1, v{V_OA}
v_lshrrev_b32 v{T+3}, 5, v{L}
v_lshl_add_u32 v{V_OA}, v{T+3}, 4, v{V_OA}
v_add_u32 v{V_OA}, s{S_M00+1}, v{V_OA}
v_mov_b32 v{V_G}, 0
v_mov_b32 v{T+3}, 0x3f803f80
s_lshr_b32 s3, s3, 1
s_add_u32 s3, s3, {QS}
s_sub_u32 s3, s3, s48
""")
    for r in range(4): p.e(f"v_accvgpr_write_b32 a{A_ONE+r}, v{T+3}")
    for r in range(4): p.e(f"v_accvgpr_write_b32 a{252+r}, -1")
    for ks in range(4): p.e(f"v_add_u32 v{V_QR+ks}, s3, v{V_KRD+ks}")
    if 'u' in x7: p.e("s_lshl_b32 s60, s49, 11")
    for n in range(1, 9): p.e(f"s_mov_b32 {PIECE[n]}, {n*PS}")
    p.e("s_mov_b32 s54, 0x8000"); p.e("s_mov_b32 s55, 0x8000")
    for r in range(32): p.e(f"v_mov_b32 v{oreg(5,0)+r}, 0")
    for r in range(4): p.e(f"v_accvgpr_write_b32 a{A_LS+20+r}, 0")
    def qchunk(c):
        out = []; r = qland(c); t2 = V_O + 24
        g = G(); g.waitvm(('Q', c)); out.append(('post', 4, g))
        if qdot:
            for x in range(4):
                for h in range(2): out.append(('val', 4, txt(f"v_dot2_f32_bf16 v{t2+2*x+h}, v{r+x}, s{S_C}, 0 op_sel:[{h},0,0] op_sel_hi:[{h},1,0]")))
        else:
            for x in range(4):
                out.append(('val', 4, txt(f"v_lshlrev_b32 v{t2+2*x}, 16, v{r+x}")))
                out.append(('val', 4, txt(f"v_and_b32 v{t2+2*x+1}, 0xffff0000, v{r+x}")))
            if c < 2*nq1:
                for x in range(4): out.append(('val', 8, txt(f"v_pk_mul_f32 {vr(t2+2*x,2)}, {vr(t2+2*x,2)}, s[{S_C}:{S_C+1}]")))
            else:
                for x in range(8): out.append(('val', 4, txt(f"v_mul_f32 v{t2+x}, s{S_C}, v{t2+x}")))
        for x in range(4): out.append(('val', 4, txt(f"v_cvt_pk_bf16_f32 v{r+x}, v{t2+2*x}, v{t2+2*x+1}")))
        b_, h = c//2, c % 2
        out.append(('mem', 8, txt(f"ds_write_b128 v{V_QW}, {vr(r,4)} offset:{((b_//3)*6 + h*3 + b_%3)*4096}", lg=('QW', c), xw=('Q', b_//3))))
        return out
    def rd_q(g, b, ks): g.e(f"ds_read_b128 {qreg(b,ks)}, v{V_QR+ks} offset:{(b//3)*24576 + (b%3)*4096}", lg=('QR', b), xr=('Q', b//3))
    md = toks(mid); k0 = 0
    its = [x[2] for c in range(2*nq1) for x in qchunk(c)]
    for n, g in enumerate(its):
        p.ext(g)
        if n == 0: TL(p, -4)
        if n == len(its) - len(qchunk(0)): TL(p, -3)
        k1 = len(md)*(n+1)//len(its)
        for g in md[k0:k1]: p.ext(g)
        k0 = k1
    p.e("s_waitcnt lgkmcnt(0)")
    p.e("s_barrier")
    TL(p, -2)
    po = toks(post)
    for b in range(nq1):
        for ks in range(4): rd_q(p, b, ks)
    for g in po: p.ext(g)
    p.waitvm([('K', 0, 0), ('K', 0, 1)])
    p.e("s_barrier")
    TL(p, -1)
    for f in range(16): rd_k(p, 0, f)
    for ks in range(4): p.e(f"v_xor_b32 v{V_KRD+ks}, 0x8000, v{V_KRD+ks}")
    p.raw(f"s_mov_b64 s[{S_Q}:{S_Q+1}], s[4:5]\ns_mov_b32 s{S_Q+2}, {8*PS+1024}\ns_mov_b32 s63, 0")
    used = (pre + ' ' + mid + ' ' + post).split()
    rem0 = [q for q in range(2) if f"v{q}" not in used]
    dl0 = [('V', 0, q) for q in rem0] + [(kv, t, q) for kv, t in (('K', 1), ('V', 1), ('K', 2)) for q in range(2)]
    def adv(g, kv, k):
        if k < 2: g.e(f"s_add_u32 s{sof(kv)+k}, s{sof(kv)+k}, 16384")
        else: q = m0r(kv, 0); g.e(f"s_xor_b64 s[{q}:{q+1}], s[{q}:{q+1}], s[54:55]")
    for kv in 'K' if rem0 else 'KV':
        for k in range(3): adv(p, kv, k)
    m0(p, m0r(dl0[0][0], dl0[0][2]))
    if tline: TL(p, 0)
    else: p.waitlg(('K', 0, 3))
    def salu(g, k):
        if k == 4: g.e(f"s_add_u32 s{S_IT}, s{S_IT}, 1")
        if k == 5: g.e(f"s_cmp_eq_u32 s{S_IT}, s{S_FI}"); g.e("s_cbranch_scc1 L_flag"); g.e("L_flag_ret:")
        if k == 6: g.e(f"s_cmp_eq_u32 s{S_IT}, {clrit}"); g.e("s_cbranch_scc1 L_clr"); g.e("L_clr_ret:")
        if k == 8: g.e(f"s_cmp_lt_u32 s{S_IT}, 5")
    def x_wl(g, b): g.e(f"ds_write_b32 v{V_LW}, a{A_LS+4*b} offset:{b*256}", lg=('XW', b), xw=('X', b))
    def x_w(g, b, j): g.e(f"ds_write_b128 v{V_AW}, {vr(oreg(b,4+j),4)} offset:{(b%2)*4096+j*1024}", lg=('XW', b), xw=('X', b))
    def lz(b): return V_KDMA + 2*b
    def x_rl(g, b): g.e(f"ds_read_b64 {vr(lz(b),2)}, v{V_LR} offset:{b*256}", lg=('XL', b), xr=('X', b))
    def x_r(g, b, j): g.e(f"ds_read_b128 {vr(oreg(b,4+j),4)}, v{V_RA} offset:{(b%2)*4096+j*1024}", lg=('XR', b, j), xr=('X', b))
    def rreg(j): return oreg(j, 4)
    def h_ld(g, j, k):
        if k < 2: g.e(f"buffer_load_dwordx4 {vr(rreg(j)+4*k,4)}, v{V_H16}, s[{S_H}:{S_H+3}], {PIECE[3*j+k]} offen {hflag}", vm=('H', j))
        else: g.e(f"buffer_load_dword v{rreg(j)+8}, v{V_H4}, s[{S_H}:{S_H+3}], {PIECE[3*j+2]} offen {hflag}", vm=('H', j))
    def h_chk(j):
        r = rreg(j)
        return [f"v_max3_u32 v{r+9}, v{r}, v{r+1}, v{r+2}"] + [f"v_max3_u32 v{r+9}, v{r+9}, v{r+k}, v{r+k+1}" for k in (3, 5, 7)] + [f"v_cmp_eq_u32 vcc, -1, v{r+9}"]
    def finish_out(add, b, pk, R):
        o = oreg(b, 0)
        for h in range(2):
            q = o + 8*h
            for r in range(0, 8, 2 if pk else 1):
                if pk: add('val', 4, f"v_pk_mul_f32 {vr(q+r,2)}, {vr(q+r,2)}, {vr(V_R,2)} op_sel:[0,{R-V_R}] op_sel_hi:[1,{R-V_R}]")
                else: add('val', 4, f"v_mul_f32 v{q+r}, v{q+r}, v{R}")
            for k in range(4): add('val', 4, f"v_cvt_pk_bf16_f32 v{q+k}, v{q+2*k}, v{q+2*k+1}")
            add('val', 4, f"s_mov_b32 s51, {(b-3)*4096}")
            add('val', 8, f"v_permlane16_swap_b32 v{q}, v{q+2}")
            add('val', 8, f"v_permlane16_swap_b32 v{q+1}, v{q+3}")
            add('mem', 8, f"buffer_store_dwordx4 {vr(q,4)}, v{V_OA}, s[{S_O}:{S_O+3}], s51 offen offset:{h*64} {oflag}")
    def mkadd(out):
        def add(cls_, c, t=None, wait=None, waitv=None):
            g = G()
            if wait: g.waitlg(wait)
            elif waitv: g.waitvm(waitv)
            else: g.raw(t)
            out.append((cls_, c, g))
        return add
    def combine(b, pk):
        out = []; add = mkadd(out)
        o = oreg(b, 0); z = lz(b)
        add('post', 4, wait=('XL', b))
        add('val', 4, f"v_add_f32 v{z}, v{z}, v{z+1}")
        if b < 3: add('mem', 8, f"buffer_store_dword v{z}, v{V_H4}, s[{S_Q}:{S_Q+3}], {PIECE[3*b+2]} offen {hflag}")
        for h in range(2):
            add('post', 4, wait=('XR', b, 2*h+1))
            q = o + 8*h
            for r in range(0, 8, 2 if pk else 1):
                if pk: add('val', 4, f"v_pk_add_f32 {vr(q+r,2)}, {vr(q+r,2)}, {vr(q+16+r,2)}")
                else: add('val', 4, f"v_add_f32 v{q+r}, v{q+r}, v{q+16+r}")
            if b < 3:
                for k in range(4): add('val', 4, f"v_cvt_pk_bf16_f32 v{q+k}, v{q+2*k}, v{q+2*k+1}")
                add('mem', 8, f"buffer_store_dwordx4 {vr(q,4)}, v{V_H16}, s[{S_Q}:{S_Q+3}], {PIECE[3*b+h]} offen {hflag}")
        return out
    def recv1(b, pk):
        out = []; add = mkadd(out)
        j = b - 3; o = oreg(b, 0); r = rreg(j)
        add('post', 4, waitv=('H', j))
        for t in h_chk(j): add('val', 4, t)
        add('post', 8, ("s_nop 0" if 'c' in x7 else f"s_cbranch_vccnz L_spin{j}") + f"\nL_spin{j}_ret:")
        for k in range(8):
            if dot:
                add('val', 4, f"v_dot2c_f32_bf16 v{o+2*k}, s52, v{r+k}")
                add('val', 4, f"v_dot2c_f32_bf16 v{o+2*k+1}, s53, v{r+k}")
            else:
                t2 = r + 10 + 2*(k % 2)
                add('val', 4, f"v_lshlrev_b32 v{t2}, 16, v{r+k}")
                add('val', 4, f"v_and_b32 v{t2+1}, 0xffff0000, v{r+k}")
                if pk: add('val', 4, f"v_pk_add_f32 {vr(o+2*k,2)}, {vr(o+2*k,2)}, {vr(t2,2)}")
                else:
                    add('val', 4, f"v_add_f32 v{o+2*k}, v{o+2*k}, v{t2}")
                    add('val', 4, f"v_add_f32 v{o+2*k+1}, v{o+2*k+1}, v{t2+1}")
        return out
    def receive(b, pk):
        j = b - 3; z = lz(b); R = V_R + b % 2; r = rreg(j)
        out = [] if early[j] else recv1(b, pk)
        pc = []; add = mkadd(pc)
        add('val', 4, f"v_add_f32 v{z}, v{z}, v{r+8}")
        add('val', 8, f"v_rcp_f32 v{R}, v{z}")
        if early[j]: out = pc; add('val', 4, "s_nop 0")
        else: out = out[:7] + pc + out[7:]
        add = mkadd(out)
        add('val', 4, f"v_max3_f32 v{V_G}, v{V_G}, v{z}, v{R}")
        finish_out(add, b, pk, R)
        return out
    def render(g, S, mf, t):
        for sg in range(S.n):
            mf(g, sg)
            for it in sorted(S.mem[sg], key=lambda it: it[0] == 'dma'):
                if it[0] == 'dma': dma(g, it[1], it[2] + t, it[3], it[4], sof(it[1]))
                if it[0] == 'rv': rd_v(g, t + it[2], it[1])
                if it[0] == 'rk': rd_k(g, t + it[2], it[1])
                if it[0] == 'g': g.ext(it[1])
            for it in S.val[sg]:
                if it[0] == 'exp': sm_exp(g, it[1])
                if it[0] == 'cvt': sm_cvt(g, it[1], it[2])
                if it[0] == 'g': g.ext(it[1])
            for it in S.post[sg]:
                if it[0] == 'm0': m0(g, it[1])
                if it[0] == 'bar': g.waitvm([(kv, t + dt, q) for kv, dt in it[1] for q in range(2)]); g.e("s_barrier")
                if it[0] == 'adv': adv(g, it[1], it[2])
                if it[0] == 'wlg': g.waitlg((it[1], t + it[2], it[3]))
                if it[0] == 'salu': salu(g, it[1])
                if it[0] == 'g': g.ext(it[1])
    E0 = 6
    def softmax(S, base, pr, pace, lo=0, hi=16):
        for i in range(lo, hi):
            s = base + E0 + pace*i
            S.put('val', ('exp', i), 8, s)
            if i % 2: S.put('val', ('cvt', pr, i//2), 4, s + 1)
    NL = (PER - E0)//2
    def vreads(S, lo0, use0, cap=8, tog=True, dt=0, bar=[('V', 0)]):
        vs = []
        if bar: S.put('post', ('bar', bar), 8, lo0 - 1)
        for x in range(32):
            lo = max(lo0 + x//2, vs[-1] if vs else 0)
            vs.append(S.place('mem', ('rv', x, dt), 4, lo, max(lo, min(lo + 3, use0 + x//2 - 8)), cap))
        for f in (0, 6, 12):
            f1 = min(f + 5, 15); hi = use0 + f - 1
            S.place('post', ('wlg', 'V', dt, f1), 4, min(hi, max(vs[2*f1+1] + 6, hi - 3)), hi, cap)
        if tog:
            s0 = vs[-1] + 1
            for nu in range(8): s0 = S.place('val', ('g', txt(f"v_xor_b32 v{V_VRD+nu}, 0x8000, v{V_VRD+nu}")), 4, s0, s0 + 5)
        return vs
    def kreads(S, lo0, end, cap=8, tog=True, dt=1, bar=True):
        ks_ = []
        if bar: S.put('post', ('bar', [('K', 1)]), 8, lo0 - 1)
        for f in range(16):
            lo = max(lo0 + f, ks_[-1] if ks_ else 0)
            ks_.append(S.place('mem', ('rk', f, dt), 4, lo, lo + 3, cap))
        S.place('post', ('wlg', 'K', dt, 15), 4, min(ks_[15] + 6, end), end, cap)
        s0 = ks_[-1]
        for ks in range(4 if tog else 0): s0 = S.place('val', ('g', txt(f"v_xor_b32 v{V_KRD+ks}, 0x8000, v{V_KRD+ks}")), 4, s0, min(s0 + 3, end))
        return ks_
    def dmas(S, dl, at, cap=8, last=False):
        ds = []
        for n, (kv, t, q) in enumerate(dl):
            s0, step = at[(kv, t)]
            for j in range(4):
                lo = max(ds[-1] + step - 1 if ds else 0, s0 + step*(4*q + j))
                ds.append(S.place('mem', ('dma', kv, t, q, j), 8, lo, lo + min(3, step - 1), cap))
        for n in range(len(dl) - last):
            nx = dl[n+1] if n + 1 < len(dl) else ('V', 0, 0)
            S.place('post', ('m0', m0r(nx[0], nx[2])), 4, ds[n*4+3], ds[n*4+4] - 1 if n + 1 < len(dl) else ds[-1] + 3, cap)
            if dl[n][2] == 1:
                s0 = ds[n*4+3]
                for k in range(3): s0 = S.place('post', ('adv', dl[n][0], k), 4, s0, s0 + 3)
        assert s0 < S.n - 2
        return ds
    seq = [('qk', b) for b in range(lag0)]
    for b in range(lag0, 6): seq += [('qk', b), ('pv', b - lag0)]
    seq += [('pv', b) for b in range(6 - lag0, 5)]
    mf0 = []; start = {}
    for k, b in seq:
        start[(k, b)] = len(mf0); mf0 += [(k, b, f) for f in range(16 if k == 'qk' else 18)]
    p0 = lambda b: preg(b) if b >= 4 else oreg(b+1, 0)
    S0 = Slots(len(mf0))
    for n, (k, b) in enumerate(seq):
        if k == 'qk': softmax(S0, start[(k, b)], p0(b), 1 if seq[n+1][0] == 'qk' else 2, 0, NL if b == 5 else 16)
    for f in (7, 11, 15): S0.put('post', ('wlg', 'K', 0, f), 4, f - 5)
    use0 = start[('pv', 0)] + 2
    v1lo = use0 - vb0
    if nq1 == 3:
        c0 = q2at; prevc = None; order = {'mem': 0, 'val': 1, 'post': 2}
        for c_, cost_, g in [x for c in range(6, 12) for x in qchunk(c)]:
            if prevc is not None and order[c_] < order[prevc]: c0 += 1
            while S0.occ[c0] + cost_ > q2cap: c0 += 1
            S0.put(c_, ('g', g), cost_, c0); prevc = c_
        v1lo = start[('qk', 3)] - qb2
        if verbose: print("q2 ends", c0, "barrier", v1lo)
        assert c0 < v1lo and c0 < start[('pv', 0)]
        g = G(); g.waitlg(('QW', 11)); g.e("s_barrier"); S0.put('post', ('g', g), 8, v1lo); v1lo += 1
        for b in range(3, 6):
            for ks in range(4): S0.put('mem', ('g', mkg(rd_q, b, ks)), 4, v1lo + (b-3)*4 + ks)
            g = G(); g.waitlg(('QR', b)); S0.put('post', ('g', g), 4, start[('qk', b)] - 1)
    vs0 = vreads(S0, use0 - vb0, use0, 12)
    k0_ = kreads(S0, max(start[('qk', 5)], S0.n - 26), S0.n - 1)
    d0 = dmas(S0, dl0, {('V', 0): (-4*step0*(2-len(rem0)), step0), ('K', 1): (k1at, step0), ('V', 1): (max(v1lo, v1at), step0), ('K', 2): (k2at, step0)}, 16)
    clears = [(f"buffer_store_dwordx4 a[252:255], v{V_H16}, s[{S_Q}:{S_Q+3}], {PIECE[3*j+k]} offen {hflag}" if k < 2 else
               f"buffer_store_dword a252, v{V_H4}, s[{S_Q}:{S_Q+3}], {PIECE[3*j+2]} offen {hflag}") for j in range(3) for k in range(3)]
    if clrit < 0 and not spread:
        s0 = d0[-9] + clr0
        for t_ in clears: s0 = S0.place('mem', ('g', txt(t_)), 8, s0 + 2, s0 + 5, 12)
        assert s0 < S0.n - 1
    assert fit >= clrit + 3
    t0 = G()
    def mfa(g, sg):
        k, b, f = mf0[sg]
        if k == 'qk': mf_qk(g, b, f)
        else: mf_pv(g, b, f, p0(b), True)
    render(t0, S0, mfa, 0)
    TL(t0, 1)
    if verbose: print("tile0 dma", d0, "vrd", vs0, "krd", k0_, "n", S0.n)
    NS = 6*PER
    S = Slots(NS, True)
    for pb in range(6): softmax(S, pb*PER, preg(pb), 2)
    dl = [(kv, t, q) for kv, t in (('V', 1), ('K', 2)) for q in range(2)]
    vs = vreads(S, 18 + vrd0, PER + 18)
    dsl = dmas(S, dl, {('V', 1): vat, ('K', 2): kat})
    ks_ = kreads(S, 5*PER + krd0, NS - 1)
    s0 = S.place('post', ('salu', 4), 4, 4*PER, 4*PER + 5)
    if spread:
        for k, at in enumerate(spread):
            s0 = S.place('mem', ('g', txt(clears[k].replace(f", {PIECE[k]} offen", ", s63 offen"))), 8, at, at + 3)
            S.place('post', ('g', txt(f"s_add_u32 s63, s63, {PS}")), 4, s0, s0 + 3)
        assert len(spread) == 3 and fit >= 4
    if clrit >= 0: S.place('post', ('salu', 6), 8, clrat, clrat + 4)
    s0 = S.place('post', ('salu', 5), 8, 5*PER + krd0 + 4, NS - 4)
    s0 = S.place('post', ('salu', 8), 4, NS - 3, NS - 1)
    if verbose: print("dma", dsl); print("vrd", vs); print("krd", ks_); print("occ", S.occ)
    def mfl(g, sg):
        pb, s = sg // PER, sg % PER
        if pb == 6: mf_pv(g, 5, s, preg(5))
        elif s < 16: mf_qk(g, pb, s)
        else: mf_pv(g, (pb-1) % 6, s - 16, preg(pb-1))
    def tile(t):
        g = G(); render(g, S, mfl, t)
        if tline:
            g.raw(tl_issue()); g.e("s_waitcnt lgkmcnt(0)"); g.e(f"s_add_u32 s3, s{S_IT}, {1+TB}"); g.raw(tl_save(0, "s3")); g.e(f"s_cmp_lt_u32 s{S_IT}, 5")
        g.e("s_cbranch_scc1 L_loop")
        return g
    SEQ = [0, 1, 2, 0, 1, 2, 3, 4, 5, 3, 4, 5]
    NF = 12*PER
    def mff(g, sg):
        pb, s = sg // PER, sg % PER
        if sg == 6*PER: TL(g, 7)
        if pb == 12: mf_pv(g, 5, s, preg(11))
        elif s < 16: mf_qk(g, SEQ[pb], s)
        else: mf_pv(g, SEQ[pb-1], s - 16, preg(pb-1))
    S7 = Slots(NF + 18)
    softmax(S7, -PER, preg(5), 2, NL, 16)
    for pb in range(12): softmax(S7, pb*PER, preg(pb), 1 if pb == 11 else 2)
    vreads(S7, 18 + vrd0, PER + 18, bar=[('V', 0)] + ([('K', 1)] if kmrg else []))
    dmas(S7, [('V', 1, 0), ('V', 1, 1)], {('V', 1): (vat[0], 4)}, last=True)
    kreads(S7, 2*PER + krd0, 3*PER - 1, bar=not kmrg)
    vreads(S7, 3*PER + 18 + vrd0, 4*PER + 18, dt=1, bar=[('V', 1)])
    kreads(S7, 8*PER + krd0, 9*PER - 1, tog=False, dt=2, bar=False)
    vreads(S7, 9*PER + 18 + vrd6, 10*PER + 18, tog=False, dt=2, bar=None)
    fl_ld = f"buffer_load_dword v{V_R}, off, s[{S_D}:{S_D+3}], s{S_FO} {hflag}"
    fl_chk = [f"v_and_b32 v{V_R}, s{S_MASK}, v{V_R}", f"v_cmp_eq_u32 vcc, 0, v{V_R}"]
    S7.place('mem', ('g', txt(fl_ld, vm=('F',))), 8, fchk - 60, fchk - 56)
    if dot: S7.place('post', ('g', mkg(lambda g: g.raw("s_mov_b32 s52, 0x3f80\ns_mov_b32 s53, 0x3f800000"))), 8, 70, 79)
    bars = {}
    PVF = [4*PER + 16, 5*PER + 16, 6*PER + 16, 10*PER + 16, 11*PER + 16, NF]
    for b in range(6):
        pv0 = PVF[b]
        S7.put('mem', ('g', mkg(x_wl, b)), 4, pv0 + 4)
        w = pv0 + 5
        ws_ = wsend if b < 3 else wstep7 if b < 4 else 2
        for j in range(4): w = S7.place('mem', ('g', mkg(x_w, b, j)), 4, max(w, pv0 + ws_*j + 6), max(w, pv0 + ws_*j + 6) + (1 if b < 5 else 0), cap7)
        bars[b] = w + bar7
    def barrier(g, b): g.waitlg([('XW', b)]); g.e("s_barrier")
    for b in range(6):
        S7.put('post', ('g', mkg(barrier, b)), 8, bars[b])
        if b == 5: break
        r = S7.place('mem', ('g', mkg(x_rl, b)), 4, bars[b] + 1, bars[b] + 1, cap7)
        for j in range(4): r = S7.place('mem', ('g', mkg(x_r, b, j)), 4, r + rstep7, r + rstep7, cap7)
    late = []
    for j in range(3):
        if rx[j] >= S7.n: late.append(j); continue
        r = rx[j]
        for k in range(3): r = S7.place('mem', ('g', mkg(h_ld, j, k)), 8, r, r + 2, cap7) + 1
    hs = [-99]
    rest = []; cur = [0]
    def sched(fn, b, lo):
        c = max(cur[0], lo); items = fn(b, False); prevc = None
        for n, (c_, cost_, g) in enumerate(items):
            order = {'mem': 0, 'val': 1, 'post': 2}
            if fn is combine and b < 3 and c_ == 'mem':
                lo_ = max(c + 1, hs[-1] + hstep); hs.append(S7.place('mem', ('g', g), 8, lo_, lo_ + 3, cap7)); continue
            if prevc is not None and order[c_] < order[prevc]: c += 1
            while c < S7.n and S7.occ[c] + cost_ > cap7: c += 1
            if c >= S7.n: rest.extend(x[2] for x in (items[n:] if n else fn(b, True))); break
            S7.put(c_, ('g', g), cost_, c); prevc = c_
        cur[0] = c + 1
        if verbose: print(fn.__name__, b, "ends at slot", c)
    def flagchk(b, pk):
        out = []; add = mkadd(out)
        add('post', 4, waitv=('F',))
        for t_ in fl_chk: add('val', 4, t_)
        add('post', 8, "s_cbranch_vccnz L_spinf\nL_spinf_ret:")
        return out
    sched(flagchk, 0, fchk)
    for j in range(3):
        if early[j]:
            c0 = cur[0]; sched(recv1, 3+j, early[j]); assert cur[0] <= PVF[3+j] + 9 and early[j] > rx[j] + 6 and early[j] >= (8+j)*PER + 3; cur[0] = c0
    for b in range(5):
        sched(combine, b, max(bars[b] + 1 + rdw7, PVF[b] + 14))
        if b < 3: assert cur[0] <= rx[b]
        if b >= 3: sched(receive, b, rx[b-3] + hold[b-3])
    t7 = G(); render(t7, S7, mff, 6)
    if verbose: print("occ7", S7.occ, "rest", len(rest), "bars", bars, "hs", hs)
    TL(t7, 8)
    x_rl(t7, 5)
    for j in range(4): x_r(t7, 5, j)
    for j in late:
        for k in range(3): h_ld(t7, j, k)
    for g in rest: t7.ext(g)
    if not rest: t7.e("s_nop 4")
    for c_, cost_, g in combine(5, True) + receive(5, True): t7.ext(g)
    if 'h' in x7: t7.L = [x for x in t7.L if not (x[0].startswith('buffer_store') and 's[8:11]' in x[0])]
    if 'd' in x7: t7.L = [x for x in t7.L if not x[0].startswith('buffer_store_dword ')]
    if 'n' in x7: t7.L = [(x[0] + ' nt' if x[0].startswith('buffer_store') and 's[8:11]' in x[0] else x[0], x[1]) for x in t7.L]
    if 'u' in x7: t7.L = [(x[0].replace(f"v{V_OA}, s[20:23]", f"v{V_H16}, s[20:23]").replace("offset:64 ", "offset:1024 ").replace("s_mov_b32 s51,", "s_add_u32 s51, s60,"), x[1]) for x in t7.L]
    if 'o' in x7: t7.L = [x for x in t7.L if not (x[0].startswith('buffer_store') and 's[20:23]' in x[0])]
    if 'l' in x7: t7.L = [x for x in t7.L if not ('H' in x[1].get('vm', ()) or 'H' in x[1].get('waitvm', ()))]
    if 'w' in x7: t7.L = [x for x in t7.L if not ('H' in x[1].get('waitvm', ()))]
    if 'f' in x7: t7.L = [x for x in t7.L if not ('F' in x[1].get('vm', ()) or 'F' in x[1].get('waitvm', ()) or 'nz L_spinf' in x[0])]
    t7.raw(f"""
s_mov_b32 s51, 0x{f2u(thresh if not force_fb else 0.0):08x}
v_cmp_nge_f32 vcc, s51, v{V_G}
{'' if skip else 's_cbranch_vccnz L_fallback'}
L_fin:
""")
    TL(t7, 9)
    if stamps:
        t7.e("s_waitcnt vmcnt(0)")
        TL(t7, 10)
        if cnt: t7.raw(f"s_add_u32 s88, s84, s{S_CNT}\ns_addc_u32 s89, s85, 0")
        t7.raw(stamp_end(4, 2, S_W))
        if tline: t7.raw(tl_store(0, 2))
    t7.e("L_end:")
    t7.e("s_endpgm")
    ol = G()
    ol.raw(f"""
L_flag:
{'buffer_store_byte' if fbyte else 'buffer_atomic_or'} v{V_X}, v{V_X+1}, s[{S_D}:{S_D+3}], 0 offen {hflag if fbyte else 'sc1'}
s_branch L_flag_ret
""")
    if clrit >= 0: ol.raw('L_clr:\n' + '\n'.join(clears) + '\ns_branch L_clr_ret')
    for nm, ld, chk in [('f', [fl_ld], fl_chk)] + [(str(j), [mkg(h_ld, j, k).L[0][0] for k in range(3)], h_chk(j)) for j in range(3)]:
        ol.e(f"L_spin{nm}:")
        for t_ in ld: ol.e(t_)
        ol.e(f"s_add_u32 s{S_CNT}, s{S_CNT}, 1")
        ol.e("s_waitcnt vmcnt(0)")
        for t_ in chk: ol.e(t_)
        ol.raw(f"""
s_cbranch_vccz L_spin{nm}_ret
s_cmp_lt_u32 s{S_CNT}, {spin}
s_cbranch_scc1 L_spin{nm}
v_mov_b32 v{V_G}, 0x7f800000
s_branch L_spin{nm}_ret
""")
    fb = G()
    M = V_P + 8
    fb.raw(f"""
L_fallback:
s_waitcnt vmcnt(0) lgkmcnt(0)
s_lshl_b32 s51, s50, 14
s_add_u32 s48, s48, s51
s_lshl_b32 s51, s49, 7
s_add_u32 s{S_K}, s6, s{S_GRP}
s_addc_u32 s{S_K+1}, s7, 0
s_add_u32 s{S_V}, s40, s{S_GRP}
s_addc_u32 s{S_V+1}, s41, 0
s_mov_b32 s{S_K+2}, 0x80000
s_mov_b32 s{S_V+2}, 0x80000
""")
    addr_dma(fb, 48); addr_v(fb, 48, 51)
    for q in range(4): fb.e(f"s_add_u32 s{S_M00+q}, s48, {q*4096}")
    for b in range(3): fb.e(f"v_mov_b32 v{M+b}, 0xff800000")
    def fb_init():
        for q in range(4): fb.e(f"s_mov_b32 s{S_OFF+q}, {q*4096}")
        fb.e(f"s_mov_b32 s{S_IT}, 0")
    def fb_load(kv):
        for q in range(4):
            m0(fb, S_M00 + q); fb.e("s_nop 0")
            for j in range(4): dma(fb, kv, 0, q, j, S_OFF)
        fb.e("s_waitcnt vmcnt(0)")
        if kv == 'K':
            for f in range(16): rd_k(fb, 0, f)
        else:
            for x in range(16, 32): rd_v(fb, 0, x)
        fb.e("s_waitcnt lgkmcnt(0)")
    def fb_next(lbl):
        for q in range(4): fb.e(f"s_add_u32 s{S_OFF+q}, s{S_OFF+q}, 16384")
        salu(fb, 4)
        fb.e(f"s_cmp_lt_u32 s{S_IT}, 32")
        fb.e(f"s_cbranch_scc1 {lbl}")
    fb_init()
    fb.e("L_fb1:")
    fb_load('K')
    for b in range(3):
        for f in range(16): mf_qk(fb, 3+b, f)
        fb.e("s_nop 9")
        for i in range(0, 16, 2): fb.e(f"v_max3_f32 v{M+b}, v{V_S+i}, v{V_S+i+1}, v{M+b}")
    fb_next("L_fb1")
    for b in range(3):
        for sw in (32, 16):
            fb.raw(f"v_mov_b32 v{T}, v{M+b}\ns_nop 1\nv_permlane{sw}_swap_b32 v{T}, v{M+b}\ns_nop 1\nv_max_f32 v{M+b}, v{T}, v{M+b}")
        for r in range(16): fb.e(f"v_mov_b32 v{oreg(3+b,0)+r}, 0")
        for r in range(4): fb.e(f"v_accvgpr_write_b32 a{A_LS+12+4*b+r}, 0")
    fb_init()
    fb.e("L_fb2:")
    fb_load('K'); fb_load('V')
    for b in range(3):
        for f in range(16): mf_qk(fb, 3+b, f)
        fb.e("s_nop 9")
        for i in range(16): fb.e(f"v_sub_f32 v{V_S+i}, v{V_S+i}, v{M+b}")
        for i in range(16): sm_exp(fb, i)
        fb.e("s_nop 0")
        for k in range(8): sm_cvt(fb, V_P, k)
        fb.e("s_nop 1")
        for s in [0, 1] + list(range(10, 18)): mf_pv(fb, 3+b, s, V_P)
    fb_next("L_fb2")
    fb.e("s_nop 9")
    for b in range(3, 6):
        fb.raw(f"v_accvgpr_read_b32 v{V_R}, a{A_LS+4*b}\ns_nop 0\nv_rcp_f32 v{V_R}, v{V_R}\ns_nop 0")
        out = []; finish_out(mkadd(out), b, False, V_R)
        for c_, cost_, g in out: fb.ext(g)
    fb.e("s_branch L_fin")
    return dict(p=p, t0=t0, tile=tile, t7=t7, ol=ol, fb=fb, verbose=verbose, skip=skip, align=align)

def tagvm(Lst): return [(t, ({**m, 'vm': ('other',)} if t.startswith('buffer_') and 'vm' not in m else m)) for t, m in Lst]
def xcheck(seg, lines):
    NW = {'K': 8, 'V': 8, 'Q': 6, 'X': 5}; NR = {'K': 16, 'V': 32, 'Q': 12, 'X': 5}
    vm, lg, nw, nr, pub, rel = [], [], {}, {}, set(), set()
    for (t0, m), t in zip(seg, lines):
        if t.startswith('s_waitcnt'):
            a = re.search(r'vmcnt\((\d+)\)', t); b = re.search(r'lgkmcnt\((\d+)\)', t)
            if a: n = int(a.group(1)); vm = vm[max(0, len(vm)-n):] if n else []
            if b: n = int(b.group(1)); lg = lg[max(0, len(lg)-n):] if n else []
        if t.startswith('s_barrier'):
            pub |= {k for k, c in nw.items() if c == NW[k[0]] and ('w', k) not in vm + lg}
            rel |= {k for k, c in nr.items() if c == NR[k[0]] and ('r', k) not in lg}
        e = None
        if 'xr' in m:
            k = m['xr']; assert k in pub or (k[1] == 8 and (k[0], 6) in pub), ('read before publish', t, k); nr[k] = nr.get(k, 0) + 1; e = ('r', k)
        if 'xw' in m:
            k = m['xw']; nw[k] = nw.get(k, 0) + 1; e = ('w', k)
            need = []
            if k[0] in 'KV' and k[1] >= 2: need = [(k[0], k[1]-2)]
            if k == ('V', 1): need = [('Q', 0)]
            if k[0] == 'X': need = [('K', 7), ('Q', 0), ('Q', 1)] + ([('X', k[1]-2)] if k[1] >= 2 else [])
            assert all(x in rel for x in need), ('write before release', t, k)
        if t.startswith('buffer_'): vm.append(e)
        if t.startswith('ds_'): lg.append(e)
    assert ('K', 8) in rel and ('V', 8) in rel
def finish(d):
    p, t0, t7, fb, ol = [tagvm(d[k].L) for k in ('p', 't0', 't7', 'fb', 'ol')]
    bodies = [tagvm(d['tile'](t).L) for t in range(1, 6)]
    head = p + t0
    trace = head + sum(bodies, []) + t7
    res = resolve(trace)
    nb = len(bodies[0]); n0 = len(head)
    rb = []
    for k in range(nb):
        c = [res[n0 + it*nb + k] for it in range(5)]
        rb.append(None if c[0] is None else (c[0][0], min(x[1] for x in c)))
        if c[0] is not None and len(set(c[1:])) != 1: print("wait differs", c)
    out_pre = emit(head, res[:n0]); out_body = emit(bodies[0], rb); out_tail = emit(t7, res[n0 + 5*nb:])
    out_fb = emit(fb, resolve(fb)); out_ol = [t for t, m in ol]
    sk = d['skip']
    assert [l for l in out_body if l.startswith(('s_add', 's_xor', 's_cmp'))][-1].startswith('s_cmp_lt_u32')
    nbad = 0 if sk else readiness(head + bodies[0] + bodies[1] + t7, out_pre + out_body + out_body + out_tail, 'main')
    nbad += readiness(fb, out_fb, 'fb') + readiness(ol, out_ol, 'ol')
    xcheck(trace, out_pre + out_body*5 + out_tail)
    if d['verbose']:
        print("predicted cycles tile0/loop/tile7", predict(out_pre), predict(out_body), predict(out_tail)); print([l for l in out_body if 'waitcnt' in l])
    if 'd' in sk: out_body = [l for l in out_body if not l.startswith('buffer_load')]
    if 'L' in sk: out_pre = [l for l in out_pre if not l.startswith('buffer_load')]
    if 'K' in sk: out_pre = [l for l in out_pre if not (l.startswith('buffer_load') and l.endswith('lds'))]
    if 'Q' in sk: out_pre = [l for l in out_pre if not (l.startswith('buffer_load') and not l.endswith('lds'))]
    if 'b' in sk: out_body = [l for l in out_body if not l.startswith('s_barrier')]
    if not sk: nbad += hazard.check(out_pre + out_body + out_body + out_tail + out_ol + out_fb, 'main', timed=True)
    assert nbad == 0 or sk
    lines = out_pre + ([f".p2align {d['align']}"] if d['align'] else []) + ["L_loop:"] + out_body + out_tail + out_ol + out_fb
    txt = "\n".join(l if l.endswith(':') or l.startswith('.') else "    " + l for l in lines)
    return wrap(txt, 256, 256, 163840, nsgpr=96)
def make(**kw): return finish(gen(**kw))

if __name__ == "__main__":
    print(build(make(verbose=True, nq1=3, pre='q012 k0', mid='k1', post='q345', step0=5, spread=(65,85,150), fit=4, dot=True), "h2"))
```

```python
from gen_h2 import *
k0 = dict(spread=(73,87,150), fit=4, dot=True, fodd=3, kmrg=True)
q = dict(nq1=3, pre='q012 k0', mid='k1 q345', post='v0', step0=5)
build(make(**k0, **q), "u0")
build(make(**k0, **q, pf=3, pfs=6), "u1")
build(make(**k0, **q, pf=3, pfs=6, pfat=0), "u2")
build(make(**k0, lag0=4, pf=3, pfs=6), "u3")
build(make(**k0, **q, pf=3, pfs=6, warm='o'), "u4")
```

```python
import sys, re, struct, subprocess
from asmlib import *
from gcore import *
import hazard
from gen_a3 import Slots
SCALE = 1.4426950408889634 / (128 ** 0.5)
def bf(x): u = f2u(x); return (u + 0x7fff + ((u >> 16) & 1)) >> 16
CDOT = bf(SCALE) | bf(SCALE - struct.unpack('<f', struct.pack('<I', bf(SCALE) << 16))[0]) << 16
A_Q, A_K, A_V, A_LS, A_ONE = 0, 96, 160, 224, 248
L = 1
V_AW, V_RA, V_H16, V_H4, V_LW, V_LR, V_OA, V_G = 2, 3, 4, 5, 6, 7, 8, 9
V_R = 10
V_KDMA = 12
V_VDMA = 16
V_X = 18
V_KRD = 20
V_VRD = 24
V_O = 32
V_S = 224
V_P = 240
T = V_S
V_QL, V_QW, V_QR = V_P + 8, V_P + 9, V_P + 10
S_Q, S_K, S_V, S_O, S_H, S_D = 8, 12, 16, 20, 32, 44
S_OFF, S_M0, S_M00 = 24, 28, 60
S_C, S_IT, S_FI = 36, 38, 39
S_RX, S_TX, S_CNT, S_GRP, S_MASK, S_W = 56, 64, 67, 72, 73, 74
S_FO = 59
PIECE = ['0', 's56', 's57', 's58', 's64', 's65', 's66', 's61', 's62']
QS = 114688
LZONE = 131072
HOFF = 0x200000
MF = "v_mfma_f32_16x16x32_bf16"
NUS = [4, 5, 6, 7, 0, 1, 2, 3]
def oreg(b, nu): return V_O + (b*8+nu)*4
def qreg(b, ks): return ar(A_Q + (b*4+ks)*4, 4)
def kreg(kb, ks): return ar(A_K + (kb*4+ks)*4, 4)
def vreg(nu, u): return A_V + (nu*2+u)*4

def gen(oflag='sc0 sc1 nt', hflag='sc0 sc1', stamps=False, thresh=2.0**40, skip='', vat=(3, 4), kat=(100, 4), k1at=0, k2at=0, vrd0=16, krd0=0, vrd6=8, verbose=False, tline=False,
        pre='q012345 k0', mid='k1', post='v0 v1', lag0=5, step0=4, cap7=12, force_fb=False, pst=False, wstep7=4, wsend=2, rstep7=1, bar7=4, rdw7=8,
        rx=(320, 345, 370), hold=(0, 0, 0), xmap=False, spin=3000, x7='', align=6, clr0=0, qdot=False, nq1=6, q2at=8, q2cap=32, qb2=8, v1at=0, clrit=-1, clrat=72, spread=None, GB=10, hstep=16, kmrg=False, fchk=165, early=(0, 0, 0), fbyte=False, fodd=0, warm='', fit=3, dot=False, cnt=False, vb0=22, pf=0, pfat=1, pfs=6, ld=False, dsl_=4, red=2, mrx=False, mstep=1, tlf=(6,), xb=False, capx=12, caps=None, gapn=5, vrdf=None, vatf=(3, 4), fld=60, lm=False, sflag=None, lflag=None, r2=False, k8at=(100, 4), v8at=(140, 4), b4=False, selat=92, pg=0, hs0=-99):
    sflag = hflag if sflag is None else sflag; lflag = hflag if lflag is None else lflag
    XS = 2 if xb else 1; NX = 4//XS; vrdf = vrd0 if vrdf is None else vrdf
    PER = 32 if ld else 34; o2 = 0 if ld else 2
    LREG = [9, 8, 2, 3, 6, 7]
    F_AW, F_RA, F_LW, F_LR = (12, 13, 14, 15) if ld else (V_AW, V_RA, V_LW, V_LR)
    V_F = V_X if ld else V_R
    PS = 1024 << GB
    def m0(g, r): g.e(f"s_mov_b32 m0, s{r}")
    def m0r(kv, q): return S_M0 + 2*(kv == 'V') + q
    def sof(kv): return S_OFF + 2*(kv == 'V')
    def dma(g, kv, t, q, j, so):
        if kv == 'K': g.e(f"buffer_load_dwordx4 v{V_KDMA+j}, s[{S_K}:{S_K+3}], s{so+q} offen offset:{j*1024} lds", vm=('K', t, q), xw=('K', t))
        else: g.e(f"buffer_load_dwordx4 v{V_VDMA+j%2}, s[{S_V}:{S_V+3}], s{so+q} offen offset:{j*1024} lds", vm=('V', t, q), xw=('V', t))
    def rd_k(g, t, f):
        kb, ks = f//4, f % 4
        g.e(f"ds_read_b128 {kreg(kb,ks)}, v{V_KRD+ks} offset:{kb*4096}", lg=('K', t, f), xr=('K', t))
    def rd_v(g, t, x):
        f, e2 = x//2, x % 2
        nu, u = NUS[f//2], f % 2
        g.e(f"ds_read_b64_tr_b16 {ar(vreg(nu,u)+e2*2,2)}, v{V_VRD+nu} offset:{(2*u+e2)*4096}", lg=('V', t, f), xr=('V', t))
    def mf_qk(g, b, f):
        kb, ks = f//4, f % 4
        d = vr(V_S + kb*4, 4)
        g.e(f"{MF} {d}, {kreg(kb,ks)}, {qreg(b,ks)}, {d if ks else 0}")
    def mf_pv(g, b, s, pr, first=False, o2=o2):
        s += 2 - o2; u = s % 2
        if s < 2: o, a_ = ar(A_LS + b*4, 4), ar(A_ONE, 4)
        else: nu = NUS[s//2 - 1]; o, a_ = vr(oreg(b, nu), 4), ar(vreg(nu, u), 4)
        g.e(f"{MF} {o}, {a_}, {vr(pr + u*4, 4)}, {0 if first and u == 0 else o}")
    def sm_exp(g, i): g.e(f"v_exp_f32 v{V_S+i}, v{V_S+i}")
    def sm_cvt(g, pr, k): g.e(f"v_cvt_pk_bf16_f32 v{pr+k}, v{V_S+2*k}, v{V_S+2*k+1}")
    def preg(b): return V_P + (b % 2)*8
    TB = 5 if pst else 0
    def TL(g, idx):
        idx += TB
        if tline and idx >= 0: g.raw(tl_issue()); g.e("s_waitcnt lgkmcnt(0)"); g.raw(tl_save(0, idx))
    def mkg(f, *a):
        g = G(); f(g, *a); return g
    def txt(t, **m):
        g = G(); g.e(t, **m); return g
    def addr_dma(g, kbase):
        g.raw(f"""
v_lshrrev_b32 v{T}, 4, v{L}              ; g
v_and_b32 v{T+1}, 15, v{L}               ; i
v_xor_b32 v{T+2}, v{T+1}, v{T}           ; i ^ g
v_lshlrev_b32 v{T+3}, 8, v{T}            ; g*256
v_lshl_add_u32 v{V_KDMA}, v{T+2}, 4, v{T+3}
""")
        for j in range(1, 4): g.e(f"v_xor_b32 v{V_KDMA+j}, {j<<6}, v{V_KDMA}")
        g.raw(f"""
v_lshlrev_b32 v{T+5}, 8, v{T+1}
v_lshl_add_u32 v{T+5}, v{T+2}, 4, v{T+5}
v_add_u32 v{V_KRD}, s{kbase}, v{T+5}
v_lshlrev_b32 v{T+2}, 1, v{T}
v_xor_b32 v{T+2}, v{T+1}, v{T+2}         ; i ^ (g<<1)
v_lshl_add_u32 v{V_VDMA}, v{T+2}, 4, v{T+3}
v_xor_b32 v{V_VDMA+1}, 0x80, v{V_VDMA}
""")
        for ks in range(1, 4): g.e(f"v_xor_b32 v{V_KRD+ks}, {ks<<6}, v{V_KRD}")
    def addr_v(g, vbase, cx):
        g.raw(f"""
v_lshrrev_b32 v{T+2}, 2, v{L}            ; row = 4g + (i>>2)
v_and_b32 v{T+3}, 7, v{T+2}
v_lshlrev_b32 v{T+3}, 5, v{T+3}
v_xor_b32 v{T+3}, s{cx}, v{T+3}
v_lshl_add_u32 v{T+3}, v{T+2}, 8, v{T+3}
v_and_b32 v{T+2}, 3, v{L}
v_lshl_add_u32 v{T+3}, v{T+2}, 3, v{T+3}
v_add_u32 v{V_VRD}, s{vbase}, v{T+3}
""")
        for nu in range(1, 8): g.e(f"v_xor_b32 v{V_VRD+nu}, {nu<<5}, v{V_VRD}")
    p = G()
    p.e("s_cmp_ge_u32 s2, 256")
    p.e("s_cbranch_scc1 L_end")
    if stamps: p.raw(stamp_start())
    p.raw(f"""
s_load_dwordx4 s[4:7], s[0:1], 0
s_load_dwordx4 s[40:43], s[0:1], 16
s_load_dwordx4 s[56:59], s[0:1], 32
v_lshrrev_b32 v{T}, 6, v0
v_and_b32 v{L}, 63, v0
v_readfirstlane_b32 s{S_W}, v{T}
""")
    def prefetch():
        p.raw(f'''
s_getpc_b64 s[92:93]
L_pc:
s_lshr_b32 s94, s2, 3
s_lshl_b32 s94, s94, 2
s_add_u32 s94, s94, s{S_W}
s_mul_i32 s94, s94, {pf << pfs}
s_min_u32 s94, s94, L_end-L_pc-{(pf-1) << pfs}
s_add_u32 s92, s92, s94
s_addc_u32 s93, s93, 0
''')
        for k in range(pf): p.e(f"s_load_dword s{[95, 94, 75, 76][k]}, s[92:93], {k << pfs}")
    if pf and pfat == -1: prefetch()
    if xmap: p.raw("""
s_lshr_b32 s44, s2, 4
s_xor_b32 s44, s44, s2
s_and_b32 s44, s44, 1
s_mul_i32 s44, s44, 17
s_xor_b32 s2, s2, s44
""")
    p.raw(f"""
s_and_b32 s44, s2, 7
s_lshr_b32 s45, s2, 5
s_lshl_b32 s44, s44, 3
s_add_u32 s44, s44, s45          ; group
s_lshl_b32 s{S_GRP}, s44, 19
s_bfe_u32 s45, s2, 0x10003
s_lshl_b32 s44, s44, 1
s_add_u32 s44, s44, s45
s_mul_i32 s46, s44, 49152
s_bfe_u32 s47, s2, 0x10004
s_mul_i32 s52, s47, 12288
s_sub_u32 s53, 12288, s52
s_lshr_b32 s49, s{S_W}, 1
s_and_b32 s50, s{S_W}, 1           ; head
s_lshl_b32 s47, s47, 1
s_add_u32 s47, s47, s49
s_lshl_b32 s47, s47, 17
s_add_u32 s45, s47, s{S_GRP}       ; k / v offset
s_lshl_b32 s48, s49, 16
s_lshl_b32 s{S_OFF}, s50, 13
s_add_u32 s{S_OFF+1}, s{S_OFF}, 4096
s_mov_b64 s[{S_OFF+2}:{S_OFF+3}], s[{S_OFF}:{S_OFF+1}]
s_add_u32 s{S_M0}, s48, s{S_OFF}
s_add_u32 s{S_M0+1}, s{S_M0}, 4096
s_add_u32 s{S_M0+2}, s{S_M0}, 16384
s_add_u32 s{S_M0+3}, s{S_M0}, 20480
s_lshl_b32 s54, s{S_W}, 6
s_lshl_b32 s55, s{S_W}, 10
""")
    addr_dma(p, 48)
    p.raw(f"""
v_xor_b32 v{V_QL}, s54, v{V_KDMA}
v_add_u32 v{V_QL}, s55, v{V_QL}
s_mov_b32 s{S_Q+2}, 49152
s_mov_b32 s{S_Q+3}, 0x20000
s_mov_b32 s{S_K+2}, 0x20000
s_mov_b32 s{S_K+3}, 0x20000
s_mov_b32 s{S_V+2}, 0x20000
s_mov_b32 s{S_V+3}, 0x20000
s_waitcnt lgkmcnt(0)
s_add_u32 s{S_Q}, s4, s46
s_addc_u32 s{S_Q+1}, s5, 0
s_add_u32 s{S_K}, s6, s45
s_addc_u32 s{S_K+1}, s7, 0
s_add_u32 s{S_V}, s40, s45
s_addc_u32 s{S_V+1}, s41, 0
""")
    if pf and pfat == 0: prefetch()
    TL(p, -5)
    def qland(c): return oreg(1, 2) + c*4 if c < 6 else V_O + (c-6)*4
    def toks(s):
        out = []
        for tk in s.split():
            if tk[0] == 'q':
                for b in [int(c) for c in tk[1:]]:
                    for h in range(2):
                        g = G(); g.e(f"s_add_u32 s51, s{52 + b//3}, {h*24576 + (b%3)*4096}")
                        g.e(f"buffer_load_dwordx4 {vr(qland(b*2+h),4)}, v{V_QL}, s[{S_Q}:{S_Q+3}], s51 offen", vm=('Q', b*2+h)); out.append(g)
            else:
                kv, pp = tk[0].upper(), int(tk[1])
                for j in range(4):
                    g = G()
                    if j == 0: m0(g, m0r(kv, pp)); g.e("s_nop 0")
                    dma(g, kv, 0, pp, j, sof(kv)); out.append(g)
        return out
    for g in toks(pre): p.ext(g)
    if pf and pfat == 1: prefetch()
    p.raw(f"""
s_mul_i32 s3, s50, 24576
s_add_u32 s46, s46, s3
s_add_u32 s46, s46, s53
s_add_u32 s{S_O}, s42, s46
s_addc_u32 s{S_O+1}, s43, 0
s_mov_b32 s{S_O+2}, 12288
s_mov_b32 s{S_O+3}, 0x20000
s_lshl_b32 s51, s44, 1
s_bfe_u32 s4, s2, 0x10004
s_add_u32 s51, s51, s4
s_lshl_b32 s51, s51, 2
s_add_u32 s51, s51, s{S_W}
s_lshr_b32 s4, s51, {GB}
s_mul_i32 s4, s4, {8*PS}
s_lshl_b32 s51, s51, 10
s_add_u32 s51, s51, s4
s_add_u32 s51, s51, 0x{HOFF:x}
s_add_u32 s4, s58, s51
s_addc_u32 s5, s59, 0
s_xor_b32 s51, s51, 0x1000
s_add_u32 s{S_H}, s58, s51
s_addc_u32 s{S_H+1}, s59, 0
s_mov_b32 s{S_H+2}, {8*PS+1024}
s_mov_b32 s{S_H+3}, 0x20000
s_mov_b32 s{S_D}, s56
s_mov_b32 s{S_D+1}, s57
s_mov_b32 s{S_D+2}, 256
s_mov_b32 s{S_D+3}, 0x20000
s_and_b32 s{S_FO}, s2, 0xfc
s_and_b32 s{S_MASK}, s2, 3
s_lshl_b32 s{S_MASK}, s{S_MASK}, 3
s_lshl_b32 s{S_MASK}, 1, s{S_MASK}
v_mov_b32 v{V_X}, {1 if fbyte else f's{S_MASK}'}
v_lshlrev_b32 v{V_X+1}, 8, v{L}
v_add_u32 v{V_X+1}, {'s2' if fbyte else f's{S_FO}'}, v{V_X+1}
{f's_load_dword s75, s[{S_D}:{S_D+1}], 0' if 'd' in warm else ''}
{f's_load_dword s76, s[4:5], 0' if 'h' in warm else ''}
{f's_load_dword s77, s[{S_O}:{S_O+1}], 0' if 'o' in warm else ''}
s_xor_b32 s{S_FO}, s{S_FO}, 16
s_cmp_eq_u32 s{S_W}, 0
s_cselect_b32 s{S_FI}, {fit}, 99
{f's_bfe_u32 s51, s2, 0x{0x10000+fodd:x}' if fodd else ''}
{f's_add_u32 s{S_FI}, s{S_FI}, s51' if fodd else ''}
s_mov_b32 s{S_IT}, 0
s_mov_b32 s{S_CNT}, 0
s_mov_b32 s{S_C}, 0x{(CDOT if qdot else f2u(SCALE)):08x}
s_mov_b32 s{S_C+1}, 0x{f2u(SCALE):08x}
s_add_u32 s{S_M00}, s48, 16384
s_lshl_b32 s{S_M00+1}, s49, 7
""")
    addr_v(p, S_M00, S_M00+1)
    p.raw(f"""
v_lshlrev_b32 v{V_H16}, 4, v{L}
v_lshlrev_b32 v{V_H4}, 2, v{L}
v_lshl_add_u32 v{V_H4}, s{S_W}, 8, v{V_H4}
{f's_lshl_b32 s51, s{S_W}, 12' if r2 else 's_lshl_b32 s51, s50, 13'}
{'' if r2 else 's_add_u32 s51, s51, s48'}
s_add_u32 s51, s51, {0x24000 if r2 else 0x8000}
v_add_u32 v{V_AW}, s51, v{V_H16}
v_xor_b32 v{V_RA}, {0x2000 if r2 else 0x10000}, v{V_AW}
s_add_u32 s51, s55, {QS}
v_add_u32 v{V_QW}, s51, v{V_H16}
s_lshl_b32 s51, s50, 3
s_add_u32 s51, s51, {LZONE}
v_lshl_add_u32 v{V_LR}, v{T+1}, 4, s51
v_lshl_add_u32 v{V_LW}, s49, 2, v{V_LR}
v_lshlrev_b32 v{V_OA}, 8, v{T+1}
v_and_b32 v{T+3}, 16, v{L}
v_lshl_add_u32 v{V_OA}, v{T+3}, 1, v{V_OA}
v_lshrrev_b32 v{T+3}, 5, v{L}
v_lshl_add_u32 v{V_OA}, v{T+3}, 4, v{V_OA}
v_add_u32 v{V_OA}, s{S_M00+1}, v{V_OA}
{'s_mov_b32 s91, 0x3f803f80' if ld else f'v_mov_b32 v{V_G}, 0'}
{'' if ld else f'v_mov_b32 v{T+3}, 0x3f803f80'}
s_lshr_b32 s3, s3, 1
s_add_u32 s3, s3, {QS}
s_sub_u32 s3, s3, s48
""")
    if ld:
        p.e(f"v_accvgpr_write_b32 a{A_ONE}, 1.0")
        for a_, v_ in zip((244, 245, 246, 247, 249), (V_AW, V_RA, V_LW, V_LR, V_OA)): p.e(f"v_accvgpr_write_b32 a{a_}, v{v_}")
        for r in LREG: p.e(f"v_mov_b32 v{r}, 0")
    else:
        for r in range(4): p.e(f"v_accvgpr_write_b32 a{A_ONE+r}, v{T+3}")
    for r in range(4): p.e(f"v_accvgpr_write_b32 a{252+r}, -1")
    for ks in range(4): p.e(f"v_add_u32 v{V_QR+ks}, s3, v{V_KRD+ks}")
    if 'u' in x7: p.e("s_lshl_b32 s60, s49, 11")
    for n in range(1, 7 if lm else 9): p.e(f"s_mov_b32 {PIECE[n]}, {n*PS}")
    p.e("s_mov_b32 s54, 0x8000"); p.e("s_mov_b32 s55, 0x8000")
    for r in range(32): p.e(f"v_mov_b32 v{oreg(5,0)+r}, 0")
    for r in range(0 if ld else 4): p.e(f"v_accvgpr_write_b32 a{A_LS+20+r}, 0")
    if pg == 2:
        p.e("s_mov_b64 exec, 0")
        for w in range(3): p.e(f"s_cmp_eq_u32 s{S_W}, {w}"); p.e(f"s_cbranch_scc1 L_pg{w+1}")
        p.raw("s_branch L_pg4\nL_back:\ns_mov_b64 exec, -1")
    def qchunk(c):
        out = []; r = qland(c); t2 = V_O + 24
        g = G(); g.waitvm(('Q', c)); out.append(('post', 4, g))
        if qdot:
            for x in range(4):
                for h in range(2): out.append(('val', 4, txt(f"v_dot2_f32_bf16 v{t2+2*x+h}, v{r+x}, s{S_C}, 0 op_sel:[{h},0,0] op_sel_hi:[{h},1,0]")))
        else:
            for x in range(4):
                out.append(('val', 4, txt(f"v_lshlrev_b32 v{t2+2*x}, 16, v{r+x}")))
                out.append(('val', 4, txt(f"v_and_b32 v{t2+2*x+1}, 0xffff0000, v{r+x}")))
            if c < 2*nq1:
                for x in range(4): out.append(('val', 8, txt(f"v_pk_mul_f32 {vr(t2+2*x,2)}, {vr(t2+2*x,2)}, s[{S_C}:{S_C+1}]")))
            else:
                for x in range(8): out.append(('val', 4, txt(f"v_mul_f32 v{t2+x}, s{S_C}, v{t2+x}")))
        for x in range(4): out.append(('val', 4, txt(f"v_cvt_pk_bf16_f32 v{r+x}, v{t2+2*x}, v{t2+2*x+1}")))
        b_, h = c//2, c % 2
        out.append(('mem', 8, txt(f"ds_write_b128 v{V_QW}, {vr(r,4)} offset:{((b_//3)*6 + h*3 + b_%3)*4096}", lg=('QW', c), xw=('Q', b_//3))))
        return out
    def rd_q(g, b, ks): g.e(f"ds_read_b128 {qreg(b,ks)}, v{V_QR+ks} offset:{(b//3)*24576 + (b%3)*4096}", lg=('QR', b), xr=('Q', b//3))
    md = toks(mid); k0 = 0
    its = [x[2] for c in range(2*nq1) for x in qchunk(c)]
    for n, g in enumerate(its):
        p.ext(g)
        if n == 0: TL(p, -4)
        if n == len(its) - len(qchunk(0)): TL(p, -3)
        k1 = len(md)*(n+1)//len(its)
        for g in md[k0:k1]: p.ext(g)
        k0 = k1
    p.e("s_waitcnt lgkmcnt(0)")
    p.e("s_barrier")
    TL(p, -2)
    po = toks(post)
    for b in range(nq1):
        for ks in range(4): rd_q(p, b, ks)
    for g in po: p.ext(g)
    p.waitvm([('K', 0, 0), ('K', 0, 1)])
    p.e("s_barrier")
    TL(p, -1)
    for f in range(16): rd_k(p, 0, f)
    for ks in range(4): p.e(f"v_xor_b32 v{V_KRD+ks}, 0x8000, v{V_KRD+ks}")
    p.raw(f"s_mov_b64 s[{S_Q}:{S_Q+1}], s[4:5]\ns_mov_b32 s{S_Q+2}, {(6 if lm else 8)*PS+1024}\ns_mov_b32 s63, 0")
    used = (pre + ' ' + mid + ' ' + post).split()
    rem0 = [q for q in range(2) if f"v{q}" not in used]
    dl0 = [('V', 0, q) for q in rem0] + [(kv, t, q) for kv, t in (('K', 1), ('V', 1), ('K', 2)) for q in range(2)]
    def adv(g, kv, k):
        if k < 2: g.e(f"s_add_u32 s{sof(kv)+k}, s{sof(kv)+k}, 16384")
        else: q = m0r(kv, 0); g.e(f"s_xor_b64 s[{q}:{q+1}], s[{q}:{q+1}], s[54:55]")
    for kv in 'K' if rem0 else 'KV':
        for k in range(3): adv(p, kv, k)
    m0(p, m0r(dl0[0][0], dl0[0][2]))
    if tline: TL(p, 0)
    else: p.waitlg(('K', 0, 3))
    def salu(g, k):
        if k == 4: g.e(f"s_add_u32 s{S_IT}, s{S_IT}, 1")
        if k == 5: g.e(f"s_cmp_eq_u32 s{S_IT}, s{S_FI}"); g.e("s_cbranch_scc1 L_flag"); g.e("L_flag_ret:")
        if k == 6: g.e(f"s_cmp_eq_u32 s{S_IT}, {clrit}"); g.e("s_cbranch_scc1 L_clr"); g.e("L_clr_ret:")
        if k == 8: g.e(f"s_cmp_lt_u32 s{S_IT}, 5")
    def x_wl(g, b): g.e(f"ds_write_b32 v{F_LW}, a{A_LS+4*b} offset:{b*256}", lg=('XW', b), xw=('X', b))
    def x_w(g, b, j): g.e(f"ds_write_b128 v{F_AW}, {vr(oreg(b,4+XS*j),4)} offset:{(b%2)*(2048 if r2 else 4096)+j*1024}", lg=('XW', b), xw=('X', b))
    def lz(b): return oreg(b, 5) if r2 else [10, 16, 18, 16, 20, 22][b] if ld else V_KDMA + 2*b
    def x_rl(g, b): g.e(f"ds_read_b64 {vr(lz(b),2)}, v{F_LR} offset:{b*256}", lg=('XL', b), xr=('X', b))
    def x_r(g, b, j): g.e(f"ds_read_b128 {vr(oreg(b,4+XS*j),4)}, v{F_RA} offset:{(b%2)*(2048 if r2 else 4096)+j*1024}", lg=('XR', b, j), xr=('X', b))
    def rreg(j): return oreg(j, 4)
    LQ = oreg(0, 7) if r2 else V_KDMA
    NH = [3, 2, 2] if lm else [3, 3, 3]; NP = sum(NH)
    def pc_(j, k): return PIECE[(2*j+k if k < 2 else 6) if lm else 3*j+k]
    def h_ld(g, j, k):
        if lm: return g.e(f"buffer_load_dwordx4 {vr(rreg(j)+4*k,4)}, v{V_H16}, s[{S_H}:{S_H+3}], {pc_(j,k)} offen {lflag}", vm=('H', j))
        if k < 2: g.e(f"buffer_load_dwordx4 {vr(rreg(j)+4*k,4)}, v{V_H16}, s[{S_H}:{S_H+3}], {PIECE[3*j+k]} offen {lflag}", vm=('H', j))
        else: g.e(f"buffer_load_dword v{rreg(j)+8}, v{V_H4}, s[{S_H}:{S_H+3}], {PIECE[3*j+2]} offen {lflag}", vm=('H', j))
    def h_chk(j):
        r = rreg(j)
        if lm: return [f"v_max3_u32 v{r+12}, v{r}, v{r+1}, v{r+2}"] + [f"v_max3_u32 v{r+12}, v{r+12}, v{r+k}, v{r+k+1}" for k in ((3, 5, 7, 9) if j == 0 else (3, 5, 6))] + [f"v_cmp_eq_u32 vcc, -1, v{r+12}"]
        return [f"v_max3_u32 v{r+9}, v{r}, v{r+1}, v{r+2}"] + [f"v_max3_u32 v{r+9}, v{r+9}, v{r+k}, v{r+k+1}" for k in (3, 5, 7)] + [f"v_cmp_eq_u32 vcc, -1, v{r+9}"]
    def finish_out(add, b, pk, R):
        o = oreg(b, 0)
        for h in range(2):
            q = o + 8*h
            for r in range(0, 8, 2 if pk else 1):
                if pk: add('val', 4, f"v_pk_mul_f32 {vr(q+r,2)}, {vr(q+r,2)}, {vr(V_R,2)} op_sel:[0,{R-V_R}] op_sel_hi:[1,{R-V_R}]")
                else: add('val', 4, f"v_mul_f32 v{q+r}, v{q+r}, v{R}")
            for k in range(4): add('val', 4, f"v_cvt_pk_bf16_f32 v{q+k}, v{q+2*k}, v{q+2*k+1}")
            add('val', 4, f"s_mov_b32 s51, {(b-3)*4096}")
            add('val', 8, f"v_permlane16_swap_b32 v{q}, v{q+2}")
            add('val', 8, f"v_permlane16_swap_b32 v{q+1}, v{q+3}")
            add('mem', 8, f"buffer_store_dwordx4 {vr(q,4)}, v{V_OA}, s[{S_O}:{S_O+3}], s51 offen offset:{h*64} {oflag}")
    def mkadd(out):
        def add(cls_, c, t=None, wait=None, waitv=None):
            g = G()
            if wait: g.waitlg(wait)
            elif waitv: g.waitvm(waitv)
            else: g.raw(t)
            out.append((cls_, c, g))
        return add
    def combine(b, pk):
        out = []; add = mkadd(out)
        o = oreg(b, 0); z = lz(b)
        add('post', 4, wait=('XL', b))
        add('val', 4, f"v_add_f32 v{LQ + b if lm and b < 3 else z}, v{z}, v{z+1}")
        if lm:
            if b == 2: add('mem', 8, f"buffer_store_dwordx4 {vr(LQ,4)}, v{V_H16}, s[{S_Q}:{S_Q+3}], {PIECE[6]} offen {sflag}")
        elif b < 3: add('mem', 8, f"buffer_store_dword v{z}, v{V_H4}, s[{S_Q}:{S_Q+3}], {PIECE[3*b+2]} offen {sflag}")
        if xb:
            for h in range(2):
                add('post', 4, wait=('XR', b, h))
                for nu in (2*h, 2*h+1): add('mf', 0, f"{MF} {vr(o+4*nu,4)}, {ar(2-2*(nu%2),4)}, {vr(o+16+8*h,4)}, {vr(o+4*nu,4)}")
            add('gap', 2, f"s_nop {gapn}")
            for h in range(2 if b < 3 else 0):
                q = o + 8*h
                for k in range(4): add('val', 4, f"v_cvt_pk_bf16_f32 v{q+k}, v{q+2*k}, v{q+2*k+1}")
                add('mem', 8, f"buffer_store_dwordx4 {vr(q,4)}, v{V_H16}, s[{S_Q}:{S_Q+3}], {pc_(b,h)} offen {sflag}")
            return out
        for h in range(2):
            add('post', 4, wait=('XR', b, 2*h+1))
            q = o + 8*h
            for r in range(0, 8, 2 if pk else 1):
                if pk: add('val', 4, f"v_pk_add_f32 {vr(q+r,2)}, {vr(q+r,2)}, {vr(q+16+r,2)}")
                else: add('val', 4, f"v_add_f32 v{q+r}, v{q+r}, v{q+16+r}")
            if b < 3:
                for k in range(4): add('val', 4, f"v_cvt_pk_bf16_f32 v{q+k}, v{q+2*k}, v{q+2*k+1}")
                add('mem', 8, f"buffer_store_dwordx4 {vr(q,4)}, v{V_H16}, s[{S_Q}:{S_Q+3}], {pc_(b,h)} offen {sflag}")
        return out
    def recv1(b, pk):
        out = []; add = mkadd(out)
        j = b - 3; o = oreg(b, 0); r = rreg(j)
        add('post', 4, waitv=('H', j))
        for t in h_chk(j): add('val', 4, t)
        add('post', 4 if mrx else 8, ("s_nop 0" if 'c' in x7 else f"s_cbranch_vccnz L_spin{j}") + f"\nL_spin{j}_ret:")
        if mrx:
            for nu in range(4): add('mf', 0, f"{MF} {vr(o+4*nu,4)}, {ar(2-2*(nu%2),4)}, {vr(r+4*(nu//2),4)}, {vr(o+4*nu,4)}")
            return out
        for k in range(8):
            if dot:
                add('val', 4, f"v_dot2c_f32_bf16 v{o+2*k}, s52, v{r+k}")
                add('val', 4, f"v_dot2c_f32_bf16 v{o+2*k+1}, s53, v{r+k}")
            else:
                t2 = r + 10 + 2*(k % 2)
                add('val', 4, f"v_lshlrev_b32 v{t2}, 16, v{r+k}")
                add('val', 4, f"v_and_b32 v{t2+1}, 0xffff0000, v{r+k}")
                if pk: add('val', 4, f"v_pk_add_f32 {vr(o+2*k,2)}, {vr(o+2*k,2)}, {vr(t2,2)}")
                else:
                    add('val', 4, f"v_add_f32 v{o+2*k}, v{o+2*k}, v{t2}")
                    add('val', 4, f"v_add_f32 v{o+2*k+1}, v{o+2*k+1}, v{t2+1}")
        return out
    def receive(b, pk):
        j = b - 3; z = lz(b); R = V_R + b % 2; r = rreg(j)
        out = [] if early[j] else recv1(b, pk)
        pc = []; add = mkadd(pc)
        add('val', 4, f"v_add_f32 v{z}, v{z}, v{rreg(0)+8+j if lm else r+8}")
        add('val', 8, f"v_rcp_f32 v{R}, v{z}")
        if early[j]: out = pc; add('val', 4, "s_nop 0")
        else: out = out[:7] + pc + out[7:]
        add = mkadd(out)
        add('val', 4, f"v_max3_f32 v{V_G}, v{V_G}, v{z}, v{R}")
        finish_out(add, b, pk, R)
        return out
    def render(g, S, mf, t):
        for sg in range(S.n):
            mf(g, sg)
            for it in sorted(S.mem[sg], key=lambda it: it[0] == 'dma'):
                if it[0] == 'dma': dma(g, it[1], it[2] + t, it[3], it[4], sof(it[1]))
                if it[0] == 'rv': rd_v(g, t + it[2], it[1])
                if it[0] == 'rk': rd_k(g, t + it[2], it[1])
                if it[0] == 'g': g.ext(it[1])
            for it in S.val[sg]:
                if it[0] == 'exp': sm_exp(g, it[1])
                if it[0] == 'cvt': sm_cvt(g, it[1], it[2])
                if it[0] == 'dot': g.e(f"v_dot2c_f32_bf16 v{LREG[it[3]]}, s91, v{it[1]+it[2]}")
                if it[0] == 'g': g.ext(it[1])
            for it in S.post[sg]:
                if it[0] == 'm0': m0(g, it[1])
                if it[0] == 'bar': g.waitvm([(kv, t + dt, q) for kv, dt in it[1] for q in range(2)]); g.e("s_barrier")
                if it[0] == 'adv': adv(g, it[1], it[2])
                if it[0] == 'wlg': g.waitlg((it[1], t + it[2], it[3]))
                if it[0] == 'salu': salu(g, it[1])
                if it[0] == 'g': g.ext(it[1])
    E0 = 6
    def softmax(S, base, b, pr, pace, lo=0, hi=99):
        its = []
        for i in range(16):
            s = E0 + pace*i
            its.append((s, ('exp', i), 8))
            if i % 2:
                if ld: its.append((s + 1 + dsl_*pace//2, ('dot', pr, i//2, b), 4))
                its.append((s + 1, ('cvt', pr, i//2), 4))
        for s, it, c in sorted(its, key=lambda x: x[0]):
            if lo <= s < hi: S.put('val', it, c, base + s)
    def vreads(S, lo0, use0, cap=8, tog=True, dt=0, bar=[('V', 0)]):
        vs = []
        if bar: S.put('post', ('bar', bar), 8, lo0 - 1)
        for x in range(32):
            lo = max(lo0 + x//2, vs[-1] if vs else 0)
            vs.append(S.place('mem', ('rv', x, dt), 4, lo, max(lo, min(lo + 3, use0 + x//2 - 8)), cap))
        for f in (0, 6, 12):
            f1 = min(f + 5, 15); hi = use0 + f - 1
            S.place('post', ('wlg', 'V', dt, f1), 4, min(hi, max(vs[2*f1+1] + 6, hi - 3)), hi, cap)
        if tog:
            s0 = vs[-1] + 1
            for nu in range(8): s0 = S.place('val', ('g', txt(f"v_xor_b32 v{V_VRD+nu}, 0x8000, v{V_VRD+nu}")), 4, s0, s0 + 5)
        return vs
    def kreads(S, lo0, end, cap=8, tog=True, dt=1, bar=True):
        ks_ = []
        if bar: S.put('post', ('bar', [('K', 1)]), 8, lo0 - 1)
        for f in range(16):
            lo = max(lo0 + f, ks_[-1] if ks_ else 0)
            ks_.append(S.place('mem', ('rk', f, dt), 4, lo, lo + 3, cap))
        S.place('post', ('wlg', 'K', dt, 15), 4, min(ks_[15] + 6, end), end, cap)
        s0 = ks_[-1]
        for ks in range(4 if tog else 0): s0 = S.place('val', ('g', txt(f"v_xor_b32 v{V_KRD+ks}, 0x8000, v{V_KRD+ks}")), 4, s0, min(s0 + 3, end))
        return ks_
    def dmas(S, dl, at, cap=8, last=False):
        ds = []
        for n, (kv, t, q) in enumerate(dl):
            s0, step = at[(kv, t)]
            for j in range(4):
                lo = max(ds[-1] + step - 1 if ds else 0, s0 + step*(4*q + j))
                ds.append(S.place('mem', ('dma', kv, t, q, j), 8, lo, lo + min(3, step - 1), cap))
        for n in range(len(dl) - last):
            nx = dl[n+1] if n + 1 < len(dl) else ('V', 0, 0)
            S.place('post', ('m0', m0r(nx[0], nx[2])), 4, ds[n*4+3], ds[n*4+4] - 1 if n + 1 < len(dl) else ds[-1] + 3, cap)
            if dl[n][2] == 1:
                s0 = ds[n*4+3]
                for k in range(3): s0 = S.place('post', ('adv', dl[n][0], k), 4, s0, s0 + 3)
        assert s0 < S.n - 2
        return ds
    seq = [('qk', b) for b in range(lag0)]
    for b in range(lag0, 6): seq += [('qk', b), ('pv', b - lag0)]
    seq += [('pv', b) for b in range(6 - lag0, 5)]
    mf0 = []; start = {}
    for k, b in seq:
        start[(k, b)] = len(mf0); mf0 += [(k, b, f) for f in range(16 if k == 'qk' else 16 + o2)]
    p0 = lambda b: preg(b) if b >= 4 else oreg(b+1, 0)
    S0 = Slots(len(mf0))
    for n, (k, b) in enumerate(seq):
        if k == 'qk': softmax(S0, start[(k, b)], b, p0(b), 1 if seq[n+1][0] == 'qk' else 2, 0, PER if b == 5 else 99)
    for f in (7, 11, 15): S0.put('post', ('wlg', 'K', 0, f), 4, f - 5)
    use0 = start[('pv', 0)] + o2
    v1lo = use0 - vb0
    if nq1 == 3:
        c0 = q2at; prevc = None; order = {'mem': 0, 'val': 1, 'post': 2}
        for c_, cost_, g in [x for c in range(6, 12) for x in qchunk(c)]:
            if prevc is not None and order[c_] < order[prevc]: c0 += 1
            while S0.occ[c0] + cost_ > q2cap: c0 += 1
            S0.put(c_, ('g', g), cost_, c0); prevc = c_
        v1lo = start[('qk', 3)] - qb2
        if verbose: print("q2 ends", c0, "barrier", v1lo)
        assert c0 < v1lo and c0 < start[('pv', 0)]
        g = G(); g.waitlg(('QW', 11)); g.e("s_barrier"); S0.put('post', ('g', g), 8, v1lo); v1lo += 1
        for b in range(3, 6):
            for ks in range(4): S0.put('mem', ('g', mkg(rd_q, b, ks)), 4, v1lo + (b-3)*4 + ks)
            g = G(); g.waitlg(('QR', b)); S0.put('post', ('g', g), 4, start[('qk', b)] - 1)
    vs0 = vreads(S0, use0 - vb0, use0, 12)
    k0_ = kreads(S0, max(start[('qk', 5)], S0.n - 26), S0.n - 1)
    d0 = dmas(S0, dl0, {('V', 0): (-4*step0*(2-len(rem0)), step0), ('K', 1): (k1at, step0), ('V', 1): (max(v1lo, v1at), step0), ('K', 2): (k2at, step0)}, 16)
    clears = [(f"buffer_store_dwordx4 a[252:255], v{V_H16}, s[{S_Q}:{S_Q+3}], {PIECE[3*j+k]} offen {sflag}" if k < 2 or lm else
               f"buffer_store_dword a252, v{V_H4}, s[{S_Q}:{S_Q+3}], {PIECE[3*j+2]} offen {sflag}") for j in range(3) for k in range(3)]
    if clrit < 0 and not spread:
        s0 = d0[-9] + clr0
        for t_ in clears: s0 = S0.place('mem', ('g', txt(t_)), 8, s0 + 2, s0 + 5, 12)
        assert s0 < S0.n - 1
    assert fit >= clrit + 3
    t0 = G()
    def mfa(g, sg):
        k, b, f = mf0[sg]
        if k == 'qk': mf_qk(g, b, f)
        else: mf_pv(g, b, f, p0(b), True)
    render(t0, S0, mfa, 0)
    TL(t0, 1)
    if verbose: print("tile0 dma", d0, "vrd", vs0, "krd", k0_, "n", S0.n)
    NS = 6*PER
    S = Slots(NS, True)
    for pb in range(6): softmax(S, pb*PER, pb, preg(pb), 2)
    dl = [(kv, t, q) for kv, t in (('V', 1), ('K', 2)) for q in range(2)]
    vs = vreads(S, 16 + o2 + vrd0, PER + 16 + o2)
    dsl = dmas(S, dl, {('V', 1): vat, ('K', 2): kat})
    ks_ = kreads(S, 5*PER + krd0, NS - 1)
    s0 = S.place('post', ('salu', 4), 4, 4*PER, 4*PER + 5)
    if spread:
        for k, at in enumerate(spread):
            s0 = S.place('mem', ('g', txt(clears[k].replace(f", {PIECE[k]} offen", ", s63 offen"))), 8, at, at + 3)
            S.place('post', ('g', txt(f"s_add_u32 s63, s63, {PS}")), 4, s0, s0 + 3)
        assert (lm or len(spread) == 3) and len(spread)*(fit - 1) >= NP
    if clrit >= 0: S.place('post', ('salu', 6), 8, clrat, clrat + 4)
    s0 = S.place('post', ('salu', 5), 8, 5*PER + krd0 + 4, NS - 4)
    s0 = S.place('post', ('salu', 8), 4, NS - 3, NS - 1)
    if verbose: print("dma", dsl); print("vrd", vs); print("krd", ks_); print("occ", S.occ)
    def mfl(g, sg):
        pb, s = sg // PER, sg % PER
        if pb == 6: mf_pv(g, 5, s, preg(5))
        elif s < 16: mf_qk(g, pb, s)
        else: mf_pv(g, (pb-1) % 6, s - 16, preg(pb-1))
    def tile(t):
        g = G(); render(g, S, mfl, t)
        if tline:
            g.raw(tl_issue()); g.e("s_waitcnt lgkmcnt(0)"); g.e(f"s_add_u32 s3, s{S_IT}, {1+TB}"); g.raw(tl_save(0, "s3")); g.e(f"s_cmp_lt_u32 s{S_IT}, 5")
        g.e("s_cbranch_scc1 L_loop")
        return g
    SEQ = [0, 1, 2, 3, 4, 5, 3, 4, 5, 3, 4, 5] if r2 else [0, 1, 2, 0, 1, 2, 3, 4, 5, 3, 4, 5]
    NF = 12*PER
    def mff(g, sg):
        pb, s = sg // PER, sg % PER
        if sg % PER == 0 and sg//PER in tlf: TL(g, 7 + tlf.index(sg//PER))
        if pb == 12: mf_pv(g, 5, s, preg(11))
        elif s < 16: mf_qk(g, SEQ[pb], s)
        else: mf_pv(g, SEQ[pb-1], s - 16, preg(pb-1))
    S7 = Slots(NF + 16 + o2)
    softmax(S7, -PER, 5, preg(5), 2, PER)
    for pb in range(12): softmax(S7, pb*PER, SEQ[pb], preg(pb), 1 if pb == 11 else 2)
    if r2:
        assert xb and mrx and lm and not ld
        vreads(S7, 18 + vrd0, PER + 18)
        d7 = dmas(S7, [(kv, t, q) for kv, t in (('V', 1), ('K', 2), ('V', 2)) for q in range(2)], {('V', 1): vatf, ('K', 2): k8at, ('V', 2): v8at}, last=True)
        s0 = max(d7[7], 2*PER)
        for t_ in ("s_bfe_u32 s76, s2, 0x10004\ns_sub_u32 s77, 0, s76", "s_lshl_b32 s76, s76, 19\ns_sub_u32 s76, 0x3c000, s76",
                   f"s_add_u32 s{S_K}, s{S_K}, s76\ns_addc_u32 s{S_K+1}, s{S_K+1}, s77", f"s_add_u32 s{S_V}, s{S_V}, s76\ns_addc_u32 s{S_V+1}, s{S_V+1}, s77",
                   f"s_mov_b32 s{S_K+2}, 0x24000\ns_mov_b32 s{S_V+2}, 0x24000"):
            g = G(); g.raw(t_); s0 = S7.place('post', ('g', g), 8, s0 + 1, s0 + 4)
        assert s0 < d7[8] - 1
        kreads(S7, 5*PER + krd0, 6*PER - 1, bar=False)
        vreads(S7, 6*PER + 18 + vrdf, 7*PER + 18, dt=1, bar=None)
        S7.put('post', ('bar', [('K', 2)] + ([] if b4 else [('V', 2)])), 8, 8*PER + krd0 - 1)
        kreads(S7, 8*PER + krd0, 9*PER - 1, tog=False, dt=2, bar=False)
        vreads(S7, 9*PER + 18 + vrd6, 10*PER + 18, tog=False, dt=2, bar=[('V', 2)] if b4 else None)
        if verbose: print("d7", d7)
    else:
        vreads(S7, 16 + o2 + vrd0, PER + 16 + o2, bar=[('V', 0)] + ([('K', 1)] if kmrg else []))
        dmas(S7, [('V', 1, 0), ('V', 1, 1)], {('V', 1): vatf}, last=True)
        kreads(S7, 2*PER + krd0, 3*PER - 1, bar=not kmrg)
        vreads(S7, 3*PER + 16 + o2 + vrdf, 4*PER + 16 + o2, dt=1, bar=[('V', 1)])
        kreads(S7, 8*PER + krd0, 9*PER - 1, tog=False, dt=2, bar=False)
        vreads(S7, 9*PER + 16 + o2 + vrd6, 10*PER + 16 + o2, tog=False, dt=2, bar=None)
    fl_ld = f"buffer_load_dword v{V_F}, off, s[{S_D}:{S_D+3}], s{S_FO} {hflag}"
    fl_chk = [f"v_and_b32 v{V_F}, s{S_MASK}, v{V_F}", f"v_cmp_eq_u32 vcc, 0, v{V_F}"]
    S7.place('mem', ('g', txt(fl_ld, vm=('F',))), 8, fchk - fld, fchk - fld + 4)
    if dot: S7.place('post', ('g', mkg(lambda g: g.raw("s_mov_b32 s52, 0x3f80\ns_mov_b32 s53, 0x3f800000"))), 8, 70, 79)
    if mrx:
        s0 = S7.place('post', ('g', mkg(lambda g: g.raw("s_mov_b32 s92, 0x00300003\ns_mov_b32 s93, 0x30000300"))), 8, selat, selat + 8)
        s0 = S7.place('post', ('g', mkg(lambda g: g.raw("s_lshl_b64 s[94:95], s[92:93], 2\ns_movk_i32 s52, 0x3f80"))), 8, s0 + 1, s0 + 8)
        for t_ in (f"v_and_b32 v{V_X}, 1, v{L}", f"v_lshlrev_b32 v{V_X}, 4, v{V_X}", f"v_lshlrev_b32 v{V_X}, v{V_X}, s52",
                   f"v_cndmask_b32 v{V_X+1}, 0, v{V_X}, s[92:93]", f"v_cndmask_b32 v{V_X}, 0, v{V_X}, s[94:95]"):
            s0 = S7.place('val', ('g', txt(t_)), 4, s0 + 1, s0 + 4)
        s0 = max(s0, (0 if r2 else 3*PER) + 17)
        for r, v_ in enumerate(['0', '0', f'v{V_X+1}', f'v{V_X}', '0', '0']): s0 = S7.place('val', ('g', txt(f"v_accvgpr_write_b32 a{r}, {v_}")), 4, s0 + 1, s0 + 4)
        assert not (ld or dot) and spread and min(early) > 0 and s0 < (2*PER + 4 if r2 else 4*PER + 16)
    bars = {}
    PVF = [(k + (1 if r2 else 4))*PER + 16 for k in range(3)] + [ 10*PER + 16, 11*PER + 16, NF]
    if ld:
        for k in range(4): S7.place('val', ('g', txt(f"v_accvgpr_read_b32 v{12+k}, a{244+k}")), 4, 80, 100)
        for b in range(6): S7.put('post', ('g', txt(f"v_mfma_f32_16x16x4_f32 {ar(A_LS+4*b,4)}, a{A_ONE}, v{LREG[b]}, 0")), 0, PVF[b] - red)
        S7.place('val', ('g', txt(f"v_mov_b32 v{V_G}, 0")), 4, PVF[0] + 1, PVF[0] + 5); assert fchk > PVF[0] + 5
        S7.place('val', ('g', txt(f"v_accvgpr_read_b32 v{V_OA}, a249")), 4, PVF[1] + 1, PVF[1] + 40)
    for b in range(6):
        pv0 = PVF[b] + o2 - 2
        S7.put('mem', ('g', mkg(x_wl, b)), 4, pv0 + 4)
        w = pv0 + 5
        ws_ = wsend if b < 3 else wstep7 if b < 4 else 2
        for h in range(2 if xb else 0):
            q = oreg(b, 4 + 2*h); w = max(w, pv0 + 8 + 4*h)
            for k in range(4): w = S7.place('val', ('g', txt(f"v_cvt_pk_bf16_f32 v{q+k}, v{q+2*k}, v{q+2*k+1}")), 4, w, w + 2, capx)
            w = S7.place('mem', ('g', mkg(x_w, b, h)), 4, w + 1, w + 2, capx)
        for j in range(0 if xb else 4): w = S7.place('mem', ('g', mkg(x_w, b, j)), 4, max(w, pv0 + ws_*j + 6), max(w, pv0 + ws_*j + 6) + (1 if b < 5 else 0), cap7)
        bars[b] = w + bar7
    def barrier(g, b):
        if r2 and b == 2: g.waitvm([(kv, 7, q) for kv in 'KV' for q in range(2)])
        g.waitlg([('XW', b)]); g.e("s_barrier")
    for b in range(6):
        S7.put('post', ('g', mkg(barrier, b)), 8, bars[b])
        if b == 5: break
        r = S7.place('mem', ('g', mkg(x_rl, b)), 4, bars[b] + 1, bars[b] + 1, cap7)
        for j in range(NX): r = S7.place('mem', ('g', mkg(x_r, b, j)), 4, r + rstep7, r + rstep7, cap7)
    late = []
    for j in range(3):
        if rx[j] >= S7.n: late.append(j); continue
        r = rx[j]
        for k in range(NH[j]): r = S7.place('mem', ('g', mkg(h_ld, j, k)), 8, r, r + 2, cap7) + 1
    hs = [hs0 - hstep]
    rest = []; cur = [0]
    def sched(fn, b, lo):
        c = max(cur[0], lo); items = fn(b, False); prevc = None
        for n, (c_, cost_, g) in enumerate(items):
            order = {'mem': 0, 'val': 1, 'post': 2}
            if c_ in ('mf', 'gap'):
                c += mstep if c_ == 'mf' else cost_
                if c >= S7.n: rest.extend(x[2] for x in items[n:]); break
                if c_ == 'mf': S7.put('post', ('g', g), 0, c); prevc = 'post'
                continue
            if fn is combine and b < 3 and c_ == 'mem':
                lo_ = max(c + 1, hs[-1] + hstep); hs.append(S7.place('mem', ('g', g), 8, lo_, lo_ + 3, cap7)); continue
            if prevc is not None and order[c_] < order[prevc]: c += 1
            while c < S7.n and S7.occ[c] + cost_ > (caps if caps and b < 3 else cap7): c += 1
            if c >= S7.n: rest.extend(x[2] for x in (items[n:] if n else fn(b, True))); break
            S7.put(c_, ('g', g), cost_, c); prevc = c_
        cur[0] = c + 1
        if verbose: print(fn.__name__, b, "ends at slot", c)
    def flagchk(b, pk):
        out = []; add = mkadd(out)
        add('post', 4, waitv=('F',))
        for t_ in fl_chk: add('val', 4, t_)
        add('post', 8, "s_cbranch_vccnz L_spinf\nL_spinf_ret:")
        return out
    sched(flagchk, 0, fchk); rend = [0]*6; assert cur[0] <= min(rx)
    if r2: cur[0] = 0
    for j in range(3):
        if early[j]:
            c0 = cur[0]; sched(recv1, 3+j, early[j]); rend[3+j] = cur[0] + 2; assert cur[0] <= (S7.n if mrx else PVF[3+j] + 9) and (j == 2 or cur[0] - 4*mstep <= early[j+1]) and early[j] > rx[j] + 6 and (mrx or early[j] >= (8+j)*PER + 3); cur[0] = c0
    for b in range(5):
        sched(combine, b, max(bars[b] + 1 + rdw7, PVF[b] + 12 + o2, 0 if xb else rend[b]))
        if b < 3: assert cur[0] <= rx[b]
        if b >= 3: sched(receive, b, max(rx[b-3] + hold[b-3], rend[b]))
    assert not r2 or early[0] > hs[-1]
    t7 = G(); render(t7, S7, mff, 6)
    if verbose: print("occ7", S7.occ, "rest", len(rest), "bars", bars, "hs", hs)
    TL(t7, 7 + len(tlf))
    x_rl(t7, 5)
    for j in range(NX): x_r(t7, 5, j)
    for j in late:
        for k in range(NH[j]): h_ld(t7, j, k)
    for g in rest: t7.ext(g)
    if not rest: t7.e("s_nop 4")
    for c_, cost_, g in combine(5, True) + receive(5, True): t7.ext(g)
    if 'h' in x7: t7.L = [x for x in t7.L if not (x[0].startswith('buffer_store') and 's[8:11]' in x[0])]
    if 'd' in x7: t7.L = [x for x in t7.L if not x[0].startswith('buffer_store_dword ')]
    if 'n' in x7: t7.L = [(x[0] + ' nt' if x[0].startswith('buffer_store') and 's[8:11]' in x[0] else x[0], x[1]) for x in t7.L]
    if 'u' in x7: t7.L = [(x[0].replace(f"v{V_OA}, s[20:23]", f"v{V_H16}, s[20:23]").replace("offset:64 ", "offset:1024 ").replace("s_mov_b32 s51,", "s_add_u32 s51, s60,"), x[1]) for x in t7.L]
    if 'o' in x7: t7.L = [x for x in t7.L if not (x[0].startswith('buffer_store') and 's[20:23]' in x[0])]
    if 'l' in x7: t7.L = [x for x in t7.L if not ('H' in x[1].get('vm', ()) or 'H' in x[1].get('waitvm', ()))]
    if 'w' in x7: t7.L = [x for x in t7.L if not ('H' in x[1].get('waitvm', ()))]
    if 'f' in x7: t7.L = [x for x in t7.L if not ('F' in x[1].get('vm', ()) or 'F' in x[1].get('waitvm', ()) or 'nz L_spinf' in x[0])]
    t7.raw(f"""
s_mov_b32 s51, 0x{f2u(thresh if not force_fb else 0.0):08x}
v_cmp_nge_f32 vcc, s51, v{V_G}
{'' if skip else 's_cbranch_vccnz L_fallback'}
L_fin:
""")
    TL(t7, 8 + len(tlf))
    if stamps:
        t7.e("s_waitcnt vmcnt(0)")
        TL(t7, 9 + len(tlf))
        if cnt: t7.raw(f"s_add_u32 s88, s84, s{S_CNT}\ns_addc_u32 s89, s85, 0")
        t7.raw(stamp_end(4, 2, S_W))
        if tline: t7.raw(tl_store(0, 2))
    t7.e("L_end:")
    t7.e("s_endpgm")
    ol = G()
    ol.raw(f"""
L_flag:
{'buffer_store_byte' if fbyte else 'buffer_atomic_or'} v{V_X}, v{V_X+1}, s[{S_D}:{S_D+3}], 0 offen {hflag if fbyte else 'sc1'}
s_branch L_flag_ret
""")
    if clrit >= 0: ol.raw('L_clr:\n' + '\n'.join(clears) + '\ns_branch L_clr_ret')
    for nm, lds_, chk in [('f', [fl_ld], fl_chk)] + [(str(j), [mkg(h_ld, j, k).L[0][0] for k in range(NH[j])], h_chk(j)) for j in range(3)]:
        ol.e(f"L_spin{nm}:")
        for t_ in lds_: ol.e(t_)
        ol.e(f"s_add_u32 s{S_CNT}, s{S_CNT}, 1")
        ol.e("s_waitcnt vmcnt(0)")
        for t_ in chk: ol.e(t_)
        ol.raw(f"""
s_cbranch_vccz L_spin{nm}_ret
s_cmp_lt_u32 s{S_CNT}, {spin}
s_cbranch_scc1 L_spin{nm}
v_mov_b32 v{V_G}, 0x7f800000
s_branch L_spin{nm}_ret
""")
    fb = G()
    M = V_P + 8
    fb.raw(f"""
L_fallback:
s_waitcnt vmcnt(0) lgkmcnt(0)
s_lshl_b32 s51, s50, 14
s_add_u32 s48, s48, s51
s_lshl_b32 s51, s49, 7
s_add_u32 s{S_K}, s6, s{S_GRP}
s_addc_u32 s{S_K+1}, s7, 0
s_add_u32 s{S_V}, s40, s{S_GRP}
s_addc_u32 s{S_V+1}, s41, 0
s_mov_b32 s{S_K+2}, 0x80000
s_mov_b32 s{S_V+2}, 0x80000
""")
    addr_dma(fb, 48); addr_v(fb, 48, 51)
    for q in range(4): fb.e(f"s_add_u32 s{S_M00+q}, s48, {q*4096}")
    for b in range(3): fb.e(f"v_mov_b32 v{M+b}, 0xff800000")
    for r in range(4 if ld else 0): fb.e(f"v_accvgpr_write_b32 a{A_ONE+r}, s91")
    def fb_init():
        for q in range(4): fb.e(f"s_mov_b32 s{S_OFF+q}, {q*4096}")
        fb.e(f"s_mov_b32 s{S_IT}, 0")
    def fb_load(kv):
        for q in range(4):
            m0(fb, S_M00 + q); fb.e("s_nop 0")
            for j in range(4): dma(fb, kv, 0, q, j, S_OFF)
        fb.e("s_waitcnt vmcnt(0)")
        if kv == 'K':
            for f in range(16): rd_k(fb, 0, f)
        else:
            for x in range(16, 32): rd_v(fb, 0, x)
        fb.e("s_waitcnt lgkmcnt(0)")
    def fb_next(lbl):
        for q in range(4): fb.e(f"s_add_u32 s{S_OFF+q}, s{S_OFF+q}, 16384")
        salu(fb, 4)
        fb.e(f"s_cmp_lt_u32 s{S_IT}, 32")
        fb.e(f"s_cbranch_scc1 {lbl}")
    fb_init()
    fb.e("L_fb1:")
    fb_load('K')
    for b in range(3):
        for f in range(16): mf_qk(fb, 3+b, f)
        fb.e("s_nop 9")
        for i in range(0, 16, 2): fb.e(f"v_max3_f32 v{M+b}, v{V_S+i}, v{V_S+i+1}, v{M+b}")
    fb_next("L_fb1")
    for b in range(3):
        for sw in (32, 16):
            fb.raw(f"v_mov_b32 v{T}, v{M+b}\ns_nop 1\nv_permlane{sw}_swap_b32 v{T}, v{M+b}\ns_nop 1\nv_max_f32 v{M+b}, v{T}, v{M+b}")
        for r in range(16): fb.e(f"v_mov_b32 v{oreg(3+b,0)+r}, 0")
        for r in range(4): fb.e(f"v_accvgpr_write_b32 a{A_LS+12+4*b+r}, 0")
    fb_init()
    fb.e("L_fb2:")
    fb_load('K'); fb_load('V')
    for b in range(3):
        for f in range(16): mf_qk(fb, 3+b, f)
        fb.e("s_nop 9")
        for i in range(16): fb.e(f"v_sub_f32 v{V_S+i}, v{V_S+i}, v{M+b}")
        for i in range(16): sm_exp(fb, i)
        fb.e("s_nop 0")
        for k in range(8): sm_cvt(fb, V_P, k)
        fb.e("s_nop 1")
        for s in [0, 1] + list(range(10, 18)): mf_pv(fb, 3+b, s, V_P, o2=2)
    fb_next("L_fb2")
    fb.e("s_nop 9")
    for b in range(3, 6):
        fb.raw(f"v_accvgpr_read_b32 v{V_R}, a{A_LS+4*b}\ns_nop 0\nv_rcp_f32 v{V_R}, v{V_R}\ns_nop 0")
        out = []; finish_out(mkadd(out), b, False, V_R)
        for c_, cost_, g in out: fb.ext(g)
    fb.e("s_branch L_fin")
    return dict(p=p, t0=t0, tile=tile, t7=t7, ol=ol, fb=fb, verbose=verbose, skip=skip, align=align, nx=NX + 1, r2=r2, pg=pg)

def tagvm(Lst): return [(t, ({**m, 'vm': ('other',)} if t.startswith('buffer_') and 'vm' not in m else m)) for t, m in Lst]
def xcheck(seg, lines, nx, r2):
    NW = {'K': 8, 'V': 8, 'Q': 6, 'X': nx}; NR = {'K': 16, 'V': 32, 'Q': 12, 'X': nx}
    vm, lg, nw, nr, pub, rel = [], [], {}, {}, set(), set()
    for (t0, m), t in zip(seg, lines):
        if t.startswith('s_waitcnt'):
            a = re.search(r'vmcnt\((\d+)\)', t); b = re.search(r'lgkmcnt\((\d+)\)', t)
            if a: n = int(a.group(1)); vm = vm[max(0, len(vm)-n):] if n else []
            if b: n = int(b.group(1)); lg = lg[max(0, len(lg)-n):] if n else []
        if t.startswith('s_barrier'):
            pub |= {k for k, c in nw.items() if c == NW[k[0]] and ('w', k) not in vm + lg}
            rel |= {k for k, c in nr.items() if c == NR[k[0]] and ('r', k) not in lg}
        e = None
        if 'xr' in m:
            k = m['xr']; assert k in pub or (not r2 and k[1] == 8 and (k[0], 6) in pub), ('read before publish', t, k); nr[k] = nr.get(k, 0) + 1; e = ('r', k)
        if 'xw' in m:
            k = m['xw']; nw[k] = nw.get(k, 0) + 1; e = ('w', k)
            need = []
            if k[0] in 'KV' and k[1] >= 2: need = [(k[0], k[1]-2)]
            if k == ('V', 1): need = [('Q', 0)]
            if k[0] == 'X': need = ([] if r2 else [('K', 7)]) + [('Q', 0), ('Q', 1)] + ([('X', k[1]-2)] if k[1] >= 2 else [])
            assert all(x in rel for x in need), ('write before release', t, k)
        if t.startswith('buffer_'): vm.append(e)
        if t.startswith('ds_'): lg.append(e)
    assert ('K', 8) in rel and ('V', 8) in rel
def finish(d):
    p, t0, t7, fb, ol = [tagvm(d[k].L) for k in ('p', 't0', 't7', 'fb', 'ol')]
    bodies = [tagvm(d['tile'](t).L) for t in range(1, 6)]
    head = p + t0
    trace = head + sum(bodies, []) + t7
    res = resolve(trace)
    nb = len(bodies[0]); n0 = len(head)
    rb = []
    for k in range(nb):
        c = [res[n0 + it*nb + k] for it in range(5)]
        rb.append(None if c[0] is None else (c[0][0], min(x[1] for x in c)))
        if c[0] is not None and len(set(c[1:])) != 1: print("wait differs", c)
    out_pre = emit(head, res[:n0]); out_body = emit(bodies[0], rb); out_tail = emit(t7, res[n0 + 5*nb:])
    out_fb = emit(fb, resolve(fb)); out_ol = [t for t, m in ol]
    sk = d['skip']
    assert [l for l in out_body if l.startswith(('s_add', 's_xor', 's_cmp'))][-1].startswith('s_cmp_lt_u32')
    kw_ = max(k for k, l in enumerate(out_body) if 'vmcnt' in l)
    assert int(re.search(r'vmcnt\((\d+)\)', out_body[kw_]).group(1)) <= sum(l.startswith('buffer_') for l in out_body[:kw_]) and out_body[kw_+1] == 's_barrier' and 'L_flag_ret:' in out_body[kw_:]
    nbad = 0 if sk else readiness(head + bodies[0] + bodies[1] + t7, out_pre + out_body + out_body + out_tail, 'main')
    nbad += readiness(fb, out_fb, 'fb') + readiness(ol, out_ol, 'ol')
    xcheck(trace, out_pre + out_body*5 + out_tail, d['nx'], d['r2'])
    if d['verbose']:
        print("predicted cycles tile0/loop/tile7", predict(out_pre), predict(out_body), predict(out_tail)); print([l for l in out_body if 'waitcnt' in l])
    if 'd' in sk: out_body = [l for l in out_body if not l.startswith('buffer_load')]
    if 'L' in sk: out_pre = [l for l in out_pre if not l.startswith('buffer_load')]
    if 'K' in sk: out_pre = [l for l in out_pre if not (l.startswith('buffer_load') and l.endswith('lds'))]
    if 'Q' in sk: out_pre = [l for l in out_pre if not (l.startswith('buffer_load') and not l.endswith('lds'))]
    if 'b' in sk: out_body = [l for l in out_body if not l.startswith('s_barrier')]
    if not sk: nbad += hazard.check(out_pre + out_body + out_body + out_tail + out_ol + out_fb, 'main', timed=True)
    assert nbad == 0 or sk
    lines = out_pre + ([f".p2align {d['align']}"] if d['align'] else []) + ["L_loop:"] + out_body + out_tail + out_ol + out_fb
    if d['pg']:
        def sizes(ls):
            r = subprocess.run(["llvm-mc", "-triple=amdgcn-amd-amdhsa", "-mcpu=gfx950", "-show-encoding"], input="\n".join(ls), capture_output=True, text=True)
            e = [l.split('encoding: [')[1].count(',') + 1 for l in r.stdout.split("\n") if 'encoding: [' in l]
            assert len(e) == sum(map(isin, ls)), r.stderr[:300]
            it = iter(e); return [next(it) if isin(l) else 0 for l in ls]
        isin = lambda l: not (l.endswith(':') or l.startswith('.') or not l.strip())
        assert out_ol[0] == 'L_flag:'
        pre_ = out_pre + ['s_branch L_pg2'] + out_ol[:3]; hot = ["L_loop:"] + out_body + out_tail
        sz = sizes(pre_ + hot + out_ol[3:] + out_fb + ['L_pg1:', 'L_pg2:', 'L_pg3:', 'L_pg4:'])
        touch = lambda k: [f"L_pg{k}:"] + (["s_cbranch_execz L_back"] if d['pg'] == 2 else [])
        k = max(k for k in range(len(pre_)) if sum(sz[:k]) <= 3068 and 'waitcnt' in pre_[k]); assert sum(sz[k:len(pre_)]) <= 4092
        assert sum(sz[:k]) <= 3068
        lines = pre_[:k] + ['s_branch L_pg1', '.p2align 12'] + touch(1) + pre_[k:] + ['.p2align 12'] + touch(2)
        a = 4; n = 3
        for l, z in zip(hot, sz[len(pre_):]):
            if a >= (n - 2)*4096 and n < 5 and z: lines += touch(n); n += 1; a += 4
            lines.append(l); a += z
        assert n == 5
        if d['verbose']: print("pages: split", sum(sz[:k]), sum(sz[k:len(pre_)]), "hot", a)
        lines += out_ol[3:] + out_fb
    txt = "\n".join(l if l.endswith(':') or l.startswith('.') else "    " + l for l in lines)
    return wrap(txt, 256, 256, 163840, nsgpr=96)
def make(**kw): return finish(gen(**kw))

if __name__ == "__main__":
    print(build(make(verbose=True, nq1=3, pre='q012 k0', mid='k1', post='q345', step0=5, spread=(65,85,150), fit=4, dot=True), "h2"))
```

```python
from gen_h2 import *
k0 = dict(spread=(73,87,150), fit=4, fodd=3, kmrg=True, pf=3, pfat=-1, lag0=4, pg=2)
q = dict(nq1=3, pre='q012 k0', mid='k1 q345', post='v0', step0=5, lag0=5)
m = dict(mrx=True, hstep=20, rx=(295,302,308), early=(372,396,410), xb=True, lm=True, r2=True, selat=0, fchk=196, fld=110, vrdf=6, k8at=(150,3), v8at=(205,4), b4=True)
build(make(**k0, dot=True), "w0")
build(make(**k0, **m), "w1")
build(make(**{**k0, 'pfat':1}, dot=True), "w2")
build(make(**{**k0, 'pfat':1}, **m), "w3")
build(make(**{**k0, **q}, **m), "w4")
```

```python
import sys, re, struct, subprocess
from asmlib import *
from gcore import *
import hazard
from gen_a3 import Slots
SCALE = 1.4426950408889634 / (128 ** 0.5)
def bf(x): u = f2u(x); return (u + 0x7fff + ((u >> 16) & 1)) >> 16
CDOT = bf(SCALE) | bf(SCALE - struct.unpack('<f', struct.pack('<I', bf(SCALE) << 16))[0]) << 16
A_Q, A_K, A_V, A_LS, A_ONE = 0, 96, 160, 224, 248
L = 1
V_AW, V_RA, V_H16, V_H4, V_LW, V_LR, V_OA, V_G = 2, 3, 4, 5, 6, 7, 8, 9
V_R = 10
V_KDMA = 12
V_VDMA = 16
V_X = 18
V_KRD = 20
V_VRD = 24
V_O = 32
V_S = 224
V_P = 240
T = V_S
V_QL, V_QW, V_QR = V_P + 8, V_P + 9, V_P + 10
S_Q, S_K, S_V, S_O, S_H, S_D = 8, 12, 16, 20, 32, 44
S_OFF, S_M0, S_M00 = 24, 28, 60
S_C, S_IT, S_FI = 36, 38, 39
S_RX, S_TX, S_CNT, S_GRP, S_MASK, S_W = 56, 64, 67, 72, 73, 74
S_FO = 59
PIECE = ['0', 's56', 's57', 's58', 's64', 's65', 's66', 's61', 's62']
QS = 114688
LZONE = 131072
HOFF = 0x200000
MF = "v_mfma_f32_16x16x32_bf16"
NUS = [4, 5, 6, 7, 0, 1, 2, 3]
def oreg(b, nu): return V_O + (b*8+nu)*4
def qreg(b, ks): return ar(A_Q + (b*4+ks)*4, 4)
def kreg(kb, ks): return ar(A_K + (kb*4+ks)*4, 4)
def vreg(nu, u): return A_V + (nu*2+u)*4

def gen(oflag='sc0 sc1 nt', hflag='sc0 sc1', stamps=False, thresh=2.0**40, skip='', vat=(3, 4), kat=(100, 4), k1at=0, k2at=0, vrd0=16, krd0=0, vrd6=8, verbose=False, tline=False,
        pre='q012345 k0', mid='k1', post='v0 v1', lag0=5, step0=4, cap7=12, force_fb=False, pst=False, wstep7=4, wsend=2, rstep7=1, bar7=4, rdw7=8,
        rx=(320, 345, 370), hold=(0, 0, 0), xmap=False, spin=3000, x7='', align=6, clr0=0, qdot=False, nq1=6, q2at=8, q2cap=32, qb2=8, v1at=0, clrit=-1, clrat=72, spread=None, GB=10, hstep=16, kmrg=False, fchk=165, early=(0, 0, 0), fbyte=False, fodd=0, warm='', fit=3, dot=False, cnt=False, vb0=22, pf=0, pfat=1, pfs=6, ld=False, dsl_=4, red=2, mrx=False, mstep=1, tlf=(6,), xb=False, capx=12, caps=None, gapn=5, vrdf=None, vatf=(3, 4), fld=60, lm=False, sflag=None, lflag=None, r2=False, k8at=(100, 4), v8at=(140, 4), b4=False, selat=92, pg=0, hs0=-99, probe=None, kvf='', qf='', stg=0):
    sflag = hflag if sflag is None else sflag; lflag = hflag if lflag is None else lflag
    XS = 2 if xb else 1; NX = 4//XS; vrdf = vrd0 if vrdf is None else vrdf
    PER = 32 if ld else 34; o2 = 0 if ld else 2
    LREG = [9, 8, 2, 3, 6, 7]
    F_AW, F_RA, F_LW, F_LR = (12, 13, 14, 15) if ld else (V_AW, V_RA, V_LW, V_LR)
    V_F = V_X if ld else V_R
    PS = 1024 << GB
    def m0(g, r): g.e(f"s_mov_b32 m0, s{r}")
    def m0r(kv, q): return S_M0 + 2*(kv == 'V') + q
    def sof(kv): return S_OFF + 2*(kv == 'V')
    def dma(g, kv, t, q, j, so):
        if kv == 'K': g.e(f"buffer_load_dwordx4 v{V_KDMA+j}, s[{S_K}:{S_K+3}], s{so+q} offen offset:{j*1024} {kvf} lds", vm=('K', t, q), xw=('K', t))
        else: g.e(f"buffer_load_dwordx4 v{V_VDMA+j%2}, s[{S_V}:{S_V+3}], s{so+q} offen offset:{j*1024} {kvf} lds", vm=('V', t, q), xw=('V', t))
    def rd_k(g, t, f):
        kb, ks = f//4, f % 4
        g.e(f"ds_read_b128 {kreg(kb,ks)}, v{V_KRD+ks} offset:{kb*4096}", lg=('K', t, f), xr=('K', t))
    def rd_v(g, t, x):
        f, e2 = x//2, x % 2
        nu, u = NUS[f//2], f % 2
        g.e(f"ds_read_b64_tr_b16 {ar(vreg(nu,u)+e2*2,2)}, v{V_VRD+nu} offset:{(2*u+e2)*4096}", lg=('V', t, f), xr=('V', t))
    def mf_qk(g, b, f):
        kb, ks = f//4, f % 4
        d = vr(V_S + kb*4, 4)
        g.e(f"{MF} {d}, {kreg(kb,ks)}, {qreg(b,ks)}, {d if ks else 0}")
    def mf_pv(g, b, s, pr, first=False, o2=o2):
        s += 2 - o2; u = s % 2
        if s < 2: o, a_ = ar(A_LS + b*4, 4), ar(A_ONE, 4)
        else: nu = NUS[s//2 - 1]; o, a_ = vr(oreg(b, nu), 4), ar(vreg(nu, u), 4)
        g.e(f"{MF} {o}, {a_}, {vr(pr + u*4, 4)}, {0 if first and u == 0 else o}")
    def sm_exp(g, i): g.e(f"v_exp_f32 v{V_S+i}, v{V_S+i}")
    def sm_cvt(g, pr, k): g.e(f"v_cvt_pk_bf16_f32 v{pr+k}, v{V_S+2*k}, v{V_S+2*k+1}")
    def preg(b): return V_P + (b % 2)*8
    TB = 5 if pst else 0
    def TL(g, idx):
        if probe == idx: g.e("s_memrealtime s[88:89]"); g.e("s_waitcnt lgkmcnt(0)")
        idx += TB
        if tline and idx >= 0: g.raw(tl_issue()); g.e("s_waitcnt lgkmcnt(0)"); g.raw(tl_save(0, idx))
    def mkg(f, *a):
        g = G(); f(g, *a); return g
    def txt(t, **m):
        g = G(); g.e(t, **m); return g
    def addr_dma(g, kbase):
        g.raw(f"""
v_lshrrev_b32 v{T}, 4, v{L}              ; g
v_and_b32 v{T+1}, 15, v{L}               ; i
v_xor_b32 v{T+2}, v{T+1}, v{T}           ; i ^ g
v_lshlrev_b32 v{T+3}, 8, v{T}            ; g*256
v_lshl_add_u32 v{V_KDMA}, v{T+2}, 4, v{T+3}
""")
        for j in range(1, 4): g.e(f"v_xor_b32 v{V_KDMA+j}, {j<<6}, v{V_KDMA}")
        g.raw(f"""
v_lshlrev_b32 v{T+5}, 8, v{T+1}
v_lshl_add_u32 v{T+5}, v{T+2}, 4, v{T+5}
v_add_u32 v{V_KRD}, s{kbase}, v{T+5}
v_lshlrev_b32 v{T+2}, 1, v{T}
v_xor_b32 v{T+2}, v{T+1}, v{T+2}         ; i ^ (g<<1)
v_lshl_add_u32 v{V_VDMA}, v{T+2}, 4, v{T+3}
v_xor_b32 v{V_VDMA+1}, 0x80, v{V_VDMA}
""")
        for ks in range(1, 4): g.e(f"v_xor_b32 v{V_KRD+ks}, {ks<<6}, v{V_KRD}")
    def addr_v(g, vbase, cx):
        g.raw(f"""
v_lshrrev_b32 v{T+2}, 2, v{L}            ; row = 4g + (i>>2)
v_and_b32 v{T+3}, 7, v{T+2}
v_lshlrev_b32 v{T+3}, 5, v{T+3}
v_xor_b32 v{T+3}, s{cx}, v{T+3}
v_lshl_add_u32 v{T+3}, v{T+2}, 8, v{T+3}
v_and_b32 v{T+2}, 3, v{L}
v_lshl_add_u32 v{T+3}, v{T+2}, 3, v{T+3}
v_add_u32 v{V_VRD}, s{vbase}, v{T+3}
""")
        for nu in range(1, 8): g.e(f"v_xor_b32 v{V_VRD+nu}, {nu<<5}, v{V_VRD}")
    p = G()
    p.e("s_cmp_ge_u32 s2, 256")
    p.e("s_cbranch_scc1 L_end")
    if stamps or probe is not None: p.raw(stamp_start())
    p.raw(f"""
s_load_dwordx4 s[4:7], s[0:1], 0
s_load_dwordx4 s[40:43], s[0:1], 16
s_load_dwordx4 s[56:59], s[0:1], 32
v_lshrrev_b32 v{T}, 6, v0
v_and_b32 v{L}, 63, v0
v_readfirstlane_b32 s{S_W}, v{T}
""")
    def prefetch():
        p.raw(f'''
s_getpc_b64 s[92:93]
L_pc:
s_lshr_b32 s94, s2, 3
s_lshl_b32 s94, s94, 2
s_add_u32 s94, s94, s{S_W}
s_mul_i32 s94, s94, {pf << pfs}
s_min_u32 s94, s94, L_end-L_pc-{(pf-1) << pfs}
s_add_u32 s92, s92, s94
s_addc_u32 s93, s93, 0
''')
        for k in range(pf): p.e(f"s_load_dword s{[95, 94, 75, 76][k]}, s[92:93], {k << pfs}")
    if pf and pfat == -1: prefetch()
    STG = f'''s_lshr_b32 s51, s2, 5
s_mul_i32 s51, s51, {stg[0] << 14}
s_mul_i32 s78, s2, {stg[1] << 14}
s_add_u32 s51, s51, s78
s_lshr_b32 s47, s47, 3
s_mul_i32 s47, s47, {stg[2]}
s_add_u32 s51, s51, s47
s_and_b32 s51, s51, 0x1c000
s_add_u32 s{S_OFF}, s{S_OFF}, s51
s_mov_b32 s78, 0x1ffff
s_mov_b32 s79, 0x1ffff''' if stg else ''
    assert not (stg and r2)
    if xmap: p.raw("""
s_lshr_b32 s44, s2, 4
s_xor_b32 s44, s44, s2
s_and_b32 s44, s44, 1
s_mul_i32 s44, s44, 17
s_xor_b32 s2, s2, s44
""")
    p.raw(f"""
s_and_b32 s44, s2, 7
s_lshr_b32 s45, s2, 5
s_lshl_b32 s44, s44, 3
s_add_u32 s44, s44, s45          ; group
s_lshl_b32 s{S_GRP}, s44, 19
s_bfe_u32 s45, s2, 0x10003
s_lshl_b32 s44, s44, 1
s_add_u32 s44, s44, s45
s_mul_i32 s46, s44, 49152
s_bfe_u32 s47, s2, 0x10004
s_mul_i32 s52, s47, 12288
s_sub_u32 s53, 12288, s52
s_lshr_b32 s49, s{S_W}, 1
s_and_b32 s50, s{S_W}, 1           ; head
s_lshl_b32 s47, s47, 1
s_add_u32 s47, s47, s49
s_lshl_b32 s47, s47, 17
s_add_u32 s45, s47, s{S_GRP}       ; k / v offset
s_lshl_b32 s48, s49, 16          ; ring base
s_lshl_b32 s{S_OFF}, s50, 13
s_add_u32 s{S_M0}, s48, s{S_OFF}
{STG}
s_add_u32 s{S_OFF+1}, s{S_OFF}, 4096
s_mov_b64 s[{S_OFF+2}:{S_OFF+3}], s[{S_OFF}:{S_OFF+1}]
s_add_u32 s{S_M0+1}, s{S_M0}, 4096
s_add_u32 s{S_M0+2}, s{S_M0}, 16384
s_add_u32 s{S_M0+3}, s{S_M0}, 20480
s_lshl_b32 s54, s{S_W}, 6
s_lshl_b32 s55, s{S_W}, 10
""")
    addr_dma(p, 48)
    p.raw(f"""
v_xor_b32 v{V_QL}, s54, v{V_KDMA}
v_add_u32 v{V_QL}, s55, v{V_QL}
s_mov_b32 s{S_Q+2}, 49152
s_mov_b32 s{S_Q+3}, 0x20000
s_mov_b32 s{S_K+2}, 0x20000
s_mov_b32 s{S_K+3}, 0x20000
s_mov_b32 s{S_V+2}, 0x20000
s_mov_b32 s{S_V+3}, 0x20000
s_waitcnt lgkmcnt(0)
s_add_u32 s{S_Q}, s4, s46
s_addc_u32 s{S_Q+1}, s5, 0
s_add_u32 s{S_K}, s6, s45
s_addc_u32 s{S_K+1}, s7, 0
s_add_u32 s{S_V}, s40, s45
s_addc_u32 s{S_V+1}, s41, 0
""")
    if pf and pfat == 0: prefetch()
    TL(p, -5)
    def qland(c): return oreg(1, 2) + c*4 if c < 6 else V_O + (c-6)*4
    def toks(s):
        out = []
        for tk in s.split():
            if tk[0] == 'q':
                for b in [int(c) for c in tk[1:]]:
                    for h in range(2):
                        g = G(); g.e(f"s_add_u32 s51, s{52 + b//3}, {h*24576 + (b%3)*4096}")
                        g.e(f"buffer_load_dwordx4 {vr(qland(b*2+h),4)}, v{V_QL}, s[{S_Q}:{S_Q+3}], s51 offen {qf}", vm=('Q', b*2+h)); out.append(g)
            else:
                kv, pp = tk[0].upper(), int(tk[1])
                for j in range(4):
                    g = G()
                    if j == 0: m0(g, m0r(kv, pp)); g.e("s_nop 0")
                    dma(g, kv, 0, pp, j, sof(kv)); out.append(g)
        return out
    for g in toks(pre): p.ext(g)
    if pf and pfat == 1: prefetch()
    p.raw(f"""
s_mul_i32 s3, s50, 24576
s_add_u32 s46, s46, s3
s_add_u32 s46, s46, s53
s_add_u32 s{S_O}, s42, s46
s_addc_u32 s{S_O+1}, s43, 0
s_mov_b32 s{S_O+2}, 12288
s_mov_b32 s{S_O+3}, 0x20000
s_lshl_b32 s51, s44, 1
s_bfe_u32 s4, s2, 0x10004
s_add_u32 s51, s51, s4
s_lshl_b32 s51, s51, 2
s_add_u32 s51, s51, s{S_W}
s_lshr_b32 s4, s51, {GB}
s_mul_i32 s4, s4, {8*PS}
s_lshl_b32 s51, s51, 10
s_add_u32 s51, s51, s4
s_add_u32 s51, s51, 0x{HOFF:x}
s_add_u32 s4, s58, s51
s_addc_u32 s5, s59, 0
s_xor_b32 s51, s51, 0x1000
s_add_u32 s{S_H}, s58, s51
s_addc_u32 s{S_H+1}, s59, 0
s_mov_b32 s{S_H+2}, {8*PS+1024}
s_mov_b32 s{S_H+3}, 0x20000
s_mov_b32 s{S_D}, s56
s_mov_b32 s{S_D+1}, s57
s_mov_b32 s{S_D+2}, 256
s_mov_b32 s{S_D+3}, 0x20000
s_and_b32 s{S_FO}, s2, 0xfc
s_and_b32 s{S_MASK}, s2, 3
s_lshl_b32 s{S_MASK}, s{S_MASK}, 3
s_lshl_b32 s{S_MASK}, 1, s{S_MASK}
v_mov_b32 v{V_X}, {1 if fbyte else f's{S_MASK}'}
v_lshlrev_b32 v{V_X+1}, 8, v{L}
v_add_u32 v{V_X+1}, {'s2' if fbyte else f's{S_FO}'}, v{V_X+1}
{f's_load_dword s75, s[{S_D}:{S_D+1}], 0' if 'd' in warm else ''}
{f's_load_dword s76, s[4:5], 0' if 'h' in warm else ''}
{f's_load_dword s77, s[{S_O}:{S_O+1}], 0' if 'o' in warm else ''}
s_xor_b32 s{S_FO}, s{S_FO}, 16
s_cmp_eq_u32 s{S_W}, 0
s_cselect_b32 s{S_FI}, {fit}, 99
{f's_bfe_u32 s51, s2, 0x{0x10000+fodd:x}' if fodd else ''}
{f's_add_u32 s{S_FI}, s{S_FI}, s51' if fodd else ''}
s_mov_b32 s{S_IT}, 0
s_mov_b32 s{S_CNT}, 0
s_mov_b32 s{S_C}, 0x{(CDOT if qdot else f2u(SCALE)):08x}
s_mov_b32 s{S_C+1}, 0x{f2u(SCALE):08x}
s_add_u32 s{S_M00}, s48, 16384
s_lshl_b32 s{S_M00+1}, s49, 7
""")
    addr_v(p, S_M00, S_M00+1)
    p.raw(f"""
v_lshlrev_b32 v{V_H16}, 4, v{L}
v_lshlrev_b32 v{V_H4}, 2, v{L}
v_lshl_add_u32 v{V_H4}, s{S_W}, 8, v{V_H4}
{f's_lshl_b32 s51, s{S_W}, 12' if r2 else 's_lshl_b32 s51, s50, 13'}
{'' if r2 else 's_add_u32 s51, s51, s48'}
s_add_u32 s51, s51, {0x24000 if r2 else 0x8000}
v_add_u32 v{V_AW}, s51, v{V_H16}
v_xor_b32 v{V_RA}, {0x2000 if r2 else 0x10000}, v{V_AW}
s_add_u32 s51, s55, {QS}
v_add_u32 v{V_QW}, s51, v{V_H16}          ; Q staging write address
s_lshl_b32 s51, s50, 3
s_add_u32 s51, s51, {LZONE}
v_lshl_add_u32 v{V_LR}, v{T+1}, 4, s51
v_lshl_add_u32 v{V_LW}, s49, 2, v{V_LR}
v_lshlrev_b32 v{V_OA}, 8, v{T+1}
v_and_b32 v{T+3}, 16, v{L}
v_lshl_add_u32 v{V_OA}, v{T+3}, 1, v{V_OA}
v_lshrrev_b32 v{T+3}, 5, v{L}
v_lshl_add_u32 v{V_OA}, v{T+3}, 4, v{V_OA}
v_add_u32 v{V_OA}, s{S_M00+1}, v{V_OA}
{'s_mov_b32 s91, 0x3f803f80' if ld else f'v_mov_b32 v{V_G}, 0'}
{'' if ld else f'v_mov_b32 v{T+3}, 0x3f803f80'}
s_lshr_b32 s3, s3, 1
s_add_u32 s3, s3, {QS}
s_sub_u32 s3, s3, s48
""")
    if ld:
        p.e(f"v_accvgpr_write_b32 a{A_ONE}, 1.0")
        for a_, v_ in zip((244, 245, 246, 247, 249), (V_AW, V_RA, V_LW, V_LR, V_OA)): p.e(f"v_accvgpr_write_b32 a{a_}, v{v_}")
        for r in LREG: p.e(f"v_mov_b32 v{r}, 0")
    else:
        for r in range(4): p.e(f"v_accvgpr_write_b32 a{A_ONE+r}, v{T+3}")
    for r in range(4): p.e(f"v_accvgpr_write_b32 a{252+r}, -1")
    for ks in range(4): p.e(f"v_add_u32 v{V_QR+ks}, s3, v{V_KRD+ks}")
    if 'u' in x7: p.e("s_lshl_b32 s60, s49, 11")
    for n in range(1, 7 if lm else 9): p.e(f"s_mov_b32 {PIECE[n]}, {n*PS}")
    p.e("s_mov_b32 s54, 0x8000"); p.e("s_mov_b32 s55, 0x8000")
    for r in range(32): p.e(f"v_mov_b32 v{oreg(5,0)+r}, 0")
    for r in range(0 if ld else 4): p.e(f"v_accvgpr_write_b32 a{A_LS+20+r}, 0")
    if pg == 2:
        p.e("s_mov_b64 exec, 0")
        for w in range(3): p.e(f"s_cmp_eq_u32 s{S_W}, {w}"); p.e(f"s_cbranch_scc1 L_pg{w+1}")
        p.raw("s_branch L_pg4\nL_back:\ns_mov_b64 exec, -1")
    def qchunk(c):
        out = []; r = qland(c); t2 = V_O + 24
        g = G(); g.waitvm(('Q', c)); out.append(('post', 4, g))
        if qdot:
            for x in range(4):
                for h in range(2): out.append(('val', 4, txt(f"v_dot2_f32_bf16 v{t2+2*x+h}, v{r+x}, s{S_C}, 0 op_sel:[{h},0,0] op_sel_hi:[{h},1,0]")))
        else:
            for x in range(4):
                out.append(('val', 4, txt(f"v_lshlrev_b32 v{t2+2*x}, 16, v{r+x}")))
                out.append(('val', 4, txt(f"v_and_b32 v{t2+2*x+1}, 0xffff0000, v{r+x}")))
            if c < 2*nq1:
                for x in range(4): out.append(('val', 8, txt(f"v_pk_mul_f32 {vr(t2+2*x,2)}, {vr(t2+2*x,2)}, s[{S_C}:{S_C+1}]")))
            else:
                for x in range(8): out.append(('val', 4, txt(f"v_mul_f32 v{t2+x}, s{S_C}, v{t2+x}")))
        for x in range(4): out.append(('val', 4, txt(f"v_cvt_pk_bf16_f32 v{r+x}, v{t2+2*x}, v{t2+2*x+1}")))
        b_, h = c//2, c % 2
        out.append(('mem', 8, txt(f"ds_write_b128 v{V_QW}, {vr(r,4)} offset:{((b_//3)*6 + h*3 + b_%3)*4096}", lg=('QW', c), xw=('Q', b_//3))))
        return out
    def rd_q(g, b, ks): g.e(f"ds_read_b128 {qreg(b,ks)}, v{V_QR+ks} offset:{(b//3)*24576 + (b%3)*4096}", lg=('QR', b), xr=('Q', b//3))
    md = toks(mid); k0 = 0
    its = [x[2] for c in range(2*nq1) for x in qchunk(c)]
    for n, g in enumerate(its):
        p.ext(g)
        if n == 0: TL(p, -4)
        if n == len(its) - len(qchunk(0)): TL(p, -3)
        k1 = len(md)*(n+1)//len(its)
        for g in md[k0:k1]: p.ext(g)
        k0 = k1
    p.e("s_waitcnt lgkmcnt(0)")
    p.e("s_barrier")
    TL(p, -2)
    po = toks(post)
    for b in range(nq1):
        for ks in range(4): rd_q(p, b, ks)
    for g in po: p.ext(g)
    p.waitvm([('K', 0, 0), ('K', 0, 1)])
    p.e("s_barrier")
    TL(p, -1)
    for f in range(16): rd_k(p, 0, f)
    for ks in range(4): p.e(f"v_xor_b32 v{V_KRD+ks}, 0x8000, v{V_KRD+ks}")
    p.raw(f"s_mov_b64 s[{S_Q}:{S_Q+1}], s[4:5]\ns_mov_b32 s{S_Q+2}, {(6 if lm else 8)*PS+1024}\ns_mov_b32 s63, 0")
    used = (pre + ' ' + mid + ' ' + post).split()
    rem0 = [q for q in range(2) if f"v{q}" not in used]
    dl0 = [('V', 0, q) for q in rem0] + [(kv, t, q) for kv, t in (('K', 1), ('V', 1), ('K', 2)) for q in range(2)]
    def adv(g, kv, k):
        if k < 2: g.e(f"s_add_u32 s{sof(kv)+k}, s{sof(kv)+k}, 16384")
        if k == 1 and stg: g.e(f"s_and_b64 s[{sof(kv)}:{sof(kv)+1}], s[{sof(kv)}:{sof(kv)+1}], s[78:79]")
        if k == 2: q = m0r(kv, 0); g.e(f"s_xor_b64 s[{q}:{q+1}], s[{q}:{q+1}], s[54:55]")
    for kv in 'K' if rem0 else 'KV':
        for k in range(3): adv(p, kv, k)
    m0(p, m0r(dl0[0][0], dl0[0][2]))
    if tline or probe == 0: TL(p, 0)
    else: p.waitlg(('K', 0, 3))
    def salu(g, k):
        if k == 4: g.e(f"s_add_u32 s{S_IT}, s{S_IT}, 1")
        if k == 5: g.e(f"s_cmp_eq_u32 s{S_IT}, s{S_FI}"); g.e("s_cbranch_scc1 L_flag"); g.e("L_flag_ret:")
        if k == 6: g.e(f"s_cmp_eq_u32 s{S_IT}, {clrit}"); g.e("s_cbranch_scc1 L_clr"); g.e("L_clr_ret:")
        if k == 8: g.e(f"s_cmp_lt_u32 s{S_IT}, 5")
    def x_wl(g, b): g.e(f"ds_write_b32 v{F_LW}, a{A_LS+4*b} offset:{b*256}", lg=('XW', b), xw=('X', b))
    def x_w(g, b, j): g.e(f"ds_write_b128 v{F_AW}, {vr(oreg(b,4+XS*j),4)} offset:{(b%2)*(2048 if r2 else 4096)+j*1024}", lg=('XW', b), xw=('X', b))
    def lz(b): return oreg(b, 5) if r2 else [10, 16, 18, 16, 20, 22][b] if ld else V_KDMA + 2*b
    def x_rl(g, b): g.e(f"ds_read_b64 {vr(lz(b),2)}, v{F_LR} offset:{b*256}", lg=('XL', b), xr=('X', b))
    def x_r(g, b, j): g.e(f"ds_read_b128 {vr(oreg(b,4+XS*j),4)}, v{F_RA} offset:{(b%2)*(2048 if r2 else 4096)+j*1024}", lg=('XR', b, j), xr=('X', b))
    def rreg(j): return oreg(j, 4)
    LQ = oreg(0, 7) if r2 else V_KDMA
    NH = [3, 2, 2] if lm else [3, 3, 3]; NP = sum(NH)
    def pc_(j, k): return PIECE[(2*j+k if k < 2 else 6) if lm else 3*j+k]
    def h_ld(g, j, k):
        if lm: return g.e(f"buffer_load_dwordx4 {vr(rreg(j)+4*k,4)}, v{V_H16}, s[{S_H}:{S_H+3}], {pc_(j,k)} offen {lflag}", vm=('H', j))
        if k < 2: g.e(f"buffer_load_dwordx4 {vr(rreg(j)+4*k,4)}, v{V_H16}, s[{S_H}:{S_H+3}], {PIECE[3*j+k]} offen {lflag}", vm=('H', j))
        else: g.e(f"buffer_load_dword v{rreg(j)+8}, v{V_H4}, s[{S_H}:{S_H+3}], {PIECE[3*j+2]} offen {lflag}", vm=('H', j))
    def h_chk(j):
        r = rreg(j)
        if lm: return [f"v_max3_u32 v{r+12}, v{r}, v{r+1}, v{r+2}"] + [f"v_max3_u32 v{r+12}, v{r+12}, v{r+k}, v{r+k+1}" for k in ((3, 5, 7, 9) if j == 0 else (3, 5, 6))] + [f"v_cmp_eq_u32 vcc, -1, v{r+12}"]
        return [f"v_max3_u32 v{r+9}, v{r}, v{r+1}, v{r+2}"] + [f"v_max3_u32 v{r+9}, v{r+9}, v{r+k}, v{r+k+1}" for k in (3, 5, 7)] + [f"v_cmp_eq_u32 vcc, -1, v{r+9}"]
    def finish_out(add, b, pk, R):
        o = oreg(b, 0)
        for h in range(2):
            q = o + 8*h
            for r in range(0, 8, 2 if pk else 1):
                if pk: add('val', 4, f"v_pk_mul_f32 {vr(q+r,2)}, {vr(q+r,2)}, {vr(V_R,2)} op_sel:[0,{R-V_R}] op_sel_hi:[1,{R-V_R}]")
                else: add('val', 4, f"v_mul_f32 v{q+r}, v{q+r}, v{R}")
            for k in range(4): add('val', 4, f"v_cvt_pk_bf16_f32 v{q+k}, v{q+2*k}, v{q+2*k+1}")
            add('val', 4, f"s_mov_b32 s51, {(b-3)*4096}")
            add('val', 8, f"v_permlane16_swap_b32 v{q}, v{q+2}")
            add('val', 8, f"v_permlane16_swap_b32 v{q+1}, v{q+3}")
            add('mem', 8, f"buffer_store_dwordx4 {vr(q,4)}, v{V_OA}, s[{S_O}:{S_O+3}], s51 offen offset:{h*64} {oflag}")
    def mkadd(out):
        def add(cls_, c, t=None, wait=None, waitv=None):
            g = G()
            if wait: g.waitlg(wait)
            elif waitv: g.waitvm(waitv)
            else: g.raw(t)
            out.append((cls_, c, g))
        return add
    def combine(b, pk):
        out = []; add = mkadd(out)
        o = oreg(b, 0); z = lz(b)
        add('post', 4, wait=('XL', b))
        add('val', 4, f"v_add_f32 v{LQ + b if lm and b < 3 else z}, v{z}, v{z+1}")
        if lm:
            if b == 2: add('mem', 8, f"buffer_store_dwordx4 {vr(LQ,4)}, v{V_H16}, s[{S_Q}:{S_Q+3}], {PIECE[6]} offen {sflag}")
        elif b < 3: add('mem', 8, f"buffer_store_dword v{z}, v{V_H4}, s[{S_Q}:{S_Q+3}], {PIECE[3*b+2]} offen {sflag}")
        if xb:
            for h in range(2):
                add('post', 4, wait=('XR', b, h))
                for nu in (2*h, 2*h+1): add('mf', 0, f"{MF} {vr(o+4*nu,4)}, {ar(2-2*(nu%2),4)}, {vr(o+16+8*h,4)}, {vr(o+4*nu,4)}")
            add('gap', 2, f"s_nop {gapn}")
            for h in range(2 if b < 3 else 0):
                q = o + 8*h
                for k in range(4): add('val', 4, f"v_cvt_pk_bf16_f32 v{q+k}, v{q+2*k}, v{q+2*k+1}")
                add('mem', 8, f"buffer_store_dwordx4 {vr(q,4)}, v{V_H16}, s[{S_Q}:{S_Q+3}], {pc_(b,h)} offen {sflag}")
            return out
        for h in range(2):
            add('post', 4, wait=('XR', b, 2*h+1))
            q = o + 8*h
            for r in range(0, 8, 2 if pk else 1):
                if pk: add('val', 4, f"v_pk_add_f32 {vr(q+r,2)}, {vr(q+r,2)}, {vr(q+16+r,2)}")
                else: add('val', 4, f"v_add_f32 v{q+r}, v{q+r}, v{q+16+r}")
            if b < 3:
                for k in range(4): add('val', 4, f"v_cvt_pk_bf16_f32 v{q+k}, v{q+2*k}, v{q+2*k+1}")
                add('mem', 8, f"buffer_store_dwordx4 {vr(q,4)}, v{V_H16}, s[{S_Q}:{S_Q+3}], {pc_(b,h)} offen {sflag}")
        return out
    def recv1(b, pk):
        out = []; add = mkadd(out)
        j = b - 3; o = oreg(b, 0); r = rreg(j)
        add('post', 4, waitv=('H', j))
        for t in h_chk(j): add('val', 4, t)
        add('post', 4 if mrx else 8, ("s_nop 0" if 'c' in x7 else f"s_cbranch_vccnz L_spin{j}") + f"\nL_spin{j}_ret:")
        if mrx:
            for nu in range(4): add('mf', 0, f"{MF} {vr(o+4*nu,4)}, {ar(2-2*(nu%2),4)}, {vr(r+4*(nu//2),4)}, {vr(o+4*nu,4)}")
            return out
        for k in range(8):
            if dot:
                add('val', 4, f"v_dot2c_f32_bf16 v{o+2*k}, s52, v{r+k}")
                add('val', 4, f"v_dot2c_f32_bf16 v{o+2*k+1}, s53, v{r+k}")
            else:
                t2 = r + 10 + 2*(k % 2)
                add('val', 4, f"v_lshlrev_b32 v{t2}, 16, v{r+k}")
                add('val', 4, f"v_and_b32 v{t2+1}, 0xffff0000, v{r+k}")
                if pk: add('val', 4, f"v_pk_add_f32 {vr(o+2*k,2)}, {vr(o+2*k,2)}, {vr(t2,2)}")
                else:
                    add('val', 4, f"v_add_f32 v{o+2*k}, v{o+2*k}, v{t2}")
                    add('val', 4, f"v_add_f32 v{o+2*k+1}, v{o+2*k+1}, v{t2+1}")
        return out
    def receive(b, pk):
        j = b - 3; z = lz(b); R = V_R + b % 2; r = rreg(j)
        out = [] if early[j] else recv1(b, pk)
        pc = []; add = mkadd(pc)
        add('val', 4, f"v_add_f32 v{z}, v{z}, v{rreg(0)+8+j if lm else r+8}")
        add('val', 8, f"v_rcp_f32 v{R}, v{z}")
        if early[j]: out = pc; add('val', 4, "s_nop 0")
        else: out = out[:7] + pc + out[7:]
        add = mkadd(out)
        add('val', 4, f"v_max3_f32 v{V_G}, v{V_G}, v{z}, v{R}")
        finish_out(add, b, pk, R)
        return out
    def render(g, S, mf, t):
        for sg in range(S.n):
            mf(g, sg)
            for it in sorted(S.mem[sg], key=lambda it: it[0] == 'dma'):
                if it[0] == 'dma': dma(g, it[1], it[2] + t, it[3], it[4], sof(it[1]))
                if it[0] == 'rv': rd_v(g, t + it[2], it[1])
                if it[0] == 'rk': rd_k(g, t + it[2], it[1])
                if it[0] == 'g': g.ext(it[1])
            for it in S.val[sg]:
                if it[0] == 'exp': sm_exp(g, it[1])
                if it[0] == 'cvt': sm_cvt(g, it[1], it[2])
                if it[0] == 'add': g.e(f"v_add_f32 v{LREG[it[2]]}, v{LREG[it[2]]}, v{V_S+it[1]}")
                if it[0] == 'dot': g.e(f"v_dot2c_f32_bf16 v{LREG[it[3]]}, s91, v{it[1]+it[2]}")
                if it[0] == 'g': g.ext(it[1])
            for it in S.post[sg]:
                if it[0] == 'm0': m0(g, it[1])
                if it[0] == 'bar': g.waitvm([(kv, t + dt, q) for kv, dt in it[1] for q in range(2)]); g.e("s_barrier")
                if it[0] == 'adv': adv(g, it[1], it[2])
                if it[0] == 'wlg': g.waitlg((it[1], t + it[2], it[3]))
                if it[0] == 'salu': salu(g, it[1])
                if it[0] == 'g': g.ext(it[1])
    E0 = 6
    def softmax(S, base, b, pr, pace, lo=0, hi=99):
        its = []
        for i in range(16):
            s = E0 + pace*i
            its.append((s, ('exp', i), 8))
            if i % 2:
                if ld == 'add': its += [(s + (1 if dsl_ == 4 or pace == 1 else -1), ('add', i - 1, b), 4), (s + 1 + pace, ('add', i, b), 4)]
                elif ld: its.append((s + 1 + dsl_*pace//2, ('dot', pr, i//2, b), 4))
                its.append((s + 1, ('cvt', pr, i//2), 4))
        for s, it, c in sorted(its, key=lambda x: x[0]):
            if lo <= s < hi: S.put('val', it, c, base + s)
    def vreads(S, lo0, use0, cap=8, tog=True, dt=0, bar=[('V', 0)]):
        vs = []
        if bar: S.put('post', ('bar', bar), 8, lo0 - 1)
        for x in range(32):
            lo = max(lo0 + x//2, vs[-1] if vs else 0)
            vs.append(S.place('mem', ('rv', x, dt), 4, lo, max(lo, min(lo + 3, use0 + x//2 - 8)), cap))
        for f in (0, 6, 12):
            f1 = min(f + 5, 15); hi = use0 + f - 1
            S.place('post', ('wlg', 'V', dt, f1), 4, min(hi, max(vs[2*f1+1] + 6, hi - 3)), hi, cap)
        if tog:
            s0 = vs[-1] + 1
            for nu in range(8): s0 = S.place('val', ('g', txt(f"v_xor_b32 v{V_VRD+nu}, 0x8000, v{V_VRD+nu}")), 4, s0, s0 + 5)
        return vs
    def kreads(S, lo0, end, cap=8, tog=True, dt=1, bar=True):
        ks_ = []
        if bar: S.put('post', ('bar', [('K', 1)]), 8, lo0 - 1)
        for f in range(16):
            lo = max(lo0 + f, ks_[-1] if ks_ else 0)
            ks_.append(S.place('mem', ('rk', f, dt), 4, lo, lo + 3, cap))
        S.place('post', ('wlg', 'K', dt, 15), 4, min(ks_[15] + 6, end), end, cap)
        s0 = ks_[-1]
        for ks in range(4 if tog else 0): s0 = S.place('val', ('g', txt(f"v_xor_b32 v{V_KRD+ks}, 0x8000, v{V_KRD+ks}")), 4, s0, min(s0 + 3, end))
        return ks_
    def dmas(S, dl, at, cap=8, last=False):
        ds = []
        for n, (kv, t, q) in enumerate(dl):
            s0, step = at[(kv, t)]
            for j in range(4):
                lo = max(ds[-1] + step - 1 if ds else 0, s0 + step*(4*q + j))
                ds.append(S.place('mem', ('dma', kv, t, q, j), 8, lo, lo + min(3, step - 1), cap))
        for n in range(len(dl) - last):
            nx = dl[n+1] if n + 1 < len(dl) else ('V', 0, 0)
            S.place('post', ('m0', m0r(nx[0], nx[2])), 4, ds[n*4+3], ds[n*4+4] - 1 if n + 1 < len(dl) else ds[-1] + 3, cap)
            if dl[n][2] == 1:
                s0 = ds[n*4+3]
                for k in range(3): s0 = S.place('post', ('adv', dl[n][0], k), 4, s0, s0 + 3)
        assert s0 < S.n - 2
        return ds
    seq = [('qk', b) for b in range(lag0)]
    for b in range(lag0, 6): seq += [('qk', b), ('pv', b - lag0)]
    seq += [('pv', b) for b in range(6 - lag0, 5)]
    mf0 = []; start = {}
    for k, b in seq:
        start[(k, b)] = len(mf0); mf0 += [(k, b, f) for f in range(16 if k == 'qk' else 16 + o2)]
    p0 = lambda b: preg(b) if b >= 4 else oreg(b+1, 0)
    S0 = Slots(len(mf0))
    for n, (k, b) in enumerate(seq):
        if k == 'qk': softmax(S0, start[(k, b)], b, p0(b), 1 if seq[n+1][0] == 'qk' else 2, 0, PER if b == 5 else 99)
    for f in (7, 11, 15): S0.put('post', ('wlg', 'K', 0, f), 4, f - 5)
    use0 = start[('pv', 0)] + o2
    v1lo = use0 - vb0
    if nq1 == 3:
        c0 = q2at; prevc = None; order = {'mem': 0, 'val': 1, 'post': 2}
        for c_, cost_, g in [x for c in range(6, 12) for x in qchunk(c)]:
            if prevc is not None and order[c_] < order[prevc]: c0 += 1
            while S0.occ[c0] + cost_ > q2cap: c0 += 1
            S0.put(c_, ('g', g), cost_, c0); prevc = c_
        v1lo = start[('qk', 3)] - qb2
        if verbose: print("q2 ends", c0, "barrier", v1lo)
        assert c0 < v1lo and c0 < start[('pv', 0)]
        g = G(); g.waitlg(('QW', 11)); g.e("s_barrier"); S0.put('post', ('g', g), 8, v1lo); v1lo += 1
        for b in range(3, 6):
            for ks in range(4): S0.put('mem', ('g', mkg(rd_q, b, ks)), 4, v1lo + (b-3)*4 + ks)
            g = G(); g.waitlg(('QR', b)); S0.put('post', ('g', g), 4, start[('qk', b)] - 1)
    vs0 = vreads(S0, use0 - vb0, use0, 12)
    k0_ = kreads(S0, max(start[('qk', 5)], S0.n - 26), S0.n - 1)
    d0 = dmas(S0, dl0, {('V', 0): (-4*step0*(2-len(rem0)), step0), ('K', 1): (k1at, step0), ('V', 1): (max(v1lo, v1at), step0), ('K', 2): (k2at, step0)}, 16)
    clears = [(f"buffer_store_dwordx4 a[252:255], v{V_H16}, s[{S_Q}:{S_Q+3}], {PIECE[3*j+k]} offen {sflag}" if k < 2 or lm else
               f"buffer_store_dword a252, v{V_H4}, s[{S_Q}:{S_Q+3}], {PIECE[3*j+2]} offen {sflag}") for j in range(3) for k in range(3)]
    if clrit < 0 and not spread:
        s0 = d0[-9] + clr0
        for t_ in clears: s0 = S0.place('mem', ('g', txt(t_)), 8, s0 + 2, s0 + 5, 12)
        assert s0 < S0.n - 1
    assert fit >= clrit + 3
    t0 = G()
    def mfa(g, sg):
        k, b, f = mf0[sg]
        if k == 'qk': mf_qk(g, b, f)
        else: mf_pv(g, b, f, p0(b), True)
    render(t0, S0, mfa, 0)
    TL(t0, 1)
    if verbose: print("tile0 dma", d0, "vrd", vs0, "krd", k0_, "n", S0.n)
    NS = 6*PER
    S = Slots(NS, True)
    for pb in range(6): softmax(S, pb*PER, pb, preg(pb), 2)
    dl = [(kv, t, q) for kv, t in (('V', 1), ('K', 2)) for q in range(2)]
    vs = vreads(S, 16 + o2 + vrd0, PER + 16 + o2)
    dsl = dmas(S, dl, {('V', 1): vat, ('K', 2): kat})
    ks_ = kreads(S, 5*PER + krd0, NS - 1)
    s0 = S.place('post', ('salu', 4), 4, 4*PER, 4*PER + 5)
    if spread:
        for k, at in enumerate(spread):
            s0 = S.place('mem', ('g', txt(clears[k].replace(f", {PIECE[k]} offen", ", s63 offen"))), 8, at, at + 3)
            S.place('post', ('g', txt(f"s_add_u32 s63, s63, {PS}")), 4, s0, s0 + 3)
        assert (lm or len(spread) == 3) and len(spread)*(fit - 1) >= NP
    if clrit >= 0: S.place('post', ('salu', 6), 8, clrat, clrat + 4)
    s0 = S.place('post', ('salu', 5), 8, 5*PER + krd0 + 4, NS - 4)
    s0 = S.place('post', ('salu', 8), 4, NS - 3, NS - 1)
    if verbose: print("dma", dsl); print("vrd", vs); print("krd", ks_); print("occ", S.occ)
    def mfl(g, sg):
        pb, s = sg // PER, sg % PER
        if pb == 6: mf_pv(g, 5, s, preg(5))
        elif s < 16: mf_qk(g, pb, s)
        else: mf_pv(g, (pb-1) % 6, s - 16, preg(pb-1))
    def tile(t):
        g = G(); render(g, S, mfl, t)
        if tline:
            g.raw(tl_issue()); g.e("s_waitcnt lgkmcnt(0)"); g.e(f"s_add_u32 s3, s{S_IT}, {1+TB}"); g.raw(tl_save(0, "s3")); g.e(f"s_cmp_lt_u32 s{S_IT}, 5")
        g.e("s_cbranch_scc1 L_loop")
        return g
    SEQ = [0, 1, 2, 3, 4, 5, 3, 4, 5, 3, 4, 5] if r2 else [0, 1, 2, 0, 1, 2, 3, 4, 5, 3, 4, 5]
    NF = 12*PER
    def mff(g, sg):
        pb, s = sg // PER, sg % PER
        if sg % PER == 0 and sg//PER in tlf: TL(g, 7 + tlf.index(sg//PER))
        if pb == 12: mf_pv(g, 5, s, preg(11))
        elif s < 16: mf_qk(g, SEQ[pb], s)
        else: mf_pv(g, SEQ[pb-1], s - 16, preg(pb-1))
    S7 = Slots(NF + 16 + o2)
    softmax(S7, -PER, 5, preg(5), 2, PER)
    for pb in range(12): softmax(S7, pb*PER, SEQ[pb], preg(pb), 1 if pb == 11 else 2)
    if r2:
        assert xb and mrx and lm and not ld
        vreads(S7, 18 + vrd0, PER + 18)
        d7 = dmas(S7, [(kv, t, q) for kv, t in (('V', 1), ('K', 2), ('V', 2)) for q in range(2)], {('V', 1): vatf, ('K', 2): k8at, ('V', 2): v8at}, last=True)
        s0 = max(d7[7], 2*PER)
        for t_ in ("s_bfe_u32 s76, s2, 0x10004\ns_sub_u32 s77, 0, s76", "s_lshl_b32 s76, s76, 19\ns_sub_u32 s76, 0x3c000, s76",
                   f"s_add_u32 s{S_K}, s{S_K}, s76\ns_addc_u32 s{S_K+1}, s{S_K+1}, s77", f"s_add_u32 s{S_V}, s{S_V}, s76\ns_addc_u32 s{S_V+1}, s{S_V+1}, s77",
                   f"s_mov_b32 s{S_K+2}, 0x24000\ns_mov_b32 s{S_V+2}, 0x24000"):
            g = G(); g.raw(t_); s0 = S7.place('post', ('g', g), 8, s0 + 1, s0 + 4)
        assert s0 < d7[8] - 1
        kreads(S7, 5*PER + krd0, 6*PER - 1, bar=False)
        vreads(S7, 6*PER + 18 + vrdf, 7*PER + 18, dt=1, bar=None)
        S7.put('post', ('bar', [('K', 2)] + ([] if b4 else [('V', 2)])), 8, 8*PER + krd0 - 1)
        kreads(S7, 8*PER + krd0, 9*PER - 1, tog=False, dt=2, bar=False)
        vreads(S7, 9*PER + 18 + vrd6, 10*PER + 18, tog=False, dt=2, bar=[('V', 2)] if b4 else None)
        if verbose: print("d7", d7)
    else:
        vreads(S7, 16 + o2 + vrd0, PER + 16 + o2, bar=[('V', 0)] + ([('K', 1)] if kmrg else []))
        dmas(S7, [('V', 1, 0), ('V', 1, 1)], {('V', 1): vatf}, last=True)
        kreads(S7, 2*PER + krd0, 3*PER - 1, bar=not kmrg)
        vreads(S7, 3*PER + 16 + o2 + vrdf, 4*PER + 16 + o2, dt=1, bar=[('V', 1)])
        kreads(S7, 8*PER + krd0, 9*PER - 1, tog=False, dt=2, bar=False)
        vreads(S7, 9*PER + 16 + o2 + vrd6, 10*PER + 16 + o2, tog=False, dt=2, bar=None)
    fl_ld = f"buffer_load_dword v{V_F}, off, s[{S_D}:{S_D+3}], s{S_FO} {hflag}"
    fl_chk = [f"v_and_b32 v{V_F}, s{S_MASK}, v{V_F}", f"v_cmp_eq_u32 vcc, 0, v{V_F}"]
    S7.place('mem', ('g', txt(fl_ld, vm=('F',))), 8, fchk - fld, fchk - fld + 4)
    if dot: S7.place('post', ('g', mkg(lambda g: g.raw("s_mov_b32 s52, 0x3f80\ns_mov_b32 s53, 0x3f800000"))), 8, 70, 79)
    if mrx:
        s0 = S7.place('post', ('g', mkg(lambda g: g.raw("s_mov_b32 s92, 0x00300003\ns_mov_b32 s93, 0x30000300"))), 8, selat, selat + 8)
        s0 = S7.place('post', ('g', mkg(lambda g: g.raw("s_lshl_b64 s[94:95], s[92:93], 2\ns_movk_i32 s52, 0x3f80"))), 8, s0 + 1, s0 + 8)
        for t_ in (f"v_and_b32 v{V_X}, 1, v{L}", f"v_lshlrev_b32 v{V_X}, 4, v{V_X}", f"v_lshlrev_b32 v{V_X}, v{V_X}, s52",
                   f"v_cndmask_b32 v{V_X+1}, 0, v{V_X}, s[92:93]", f"v_cndmask_b32 v{V_X}, 0, v{V_X}, s[94:95]"):
            s0 = S7.place('val', ('g', txt(t_)), 4, s0 + 1, s0 + 4)
        s0 = max(s0, (0 if r2 else 3*PER) + 17)
        for r, v_ in enumerate(['0', '0', f'v{V_X+1}', f'v{V_X}', '0', '0']): s0 = S7.place('val', ('g', txt(f"v_accvgpr_write_b32 a{r}, {v_}")), 4, s0 + 1, s0 + 4)
        assert not (ld or dot) and spread and min(early) > 0 and s0 < (2*PER + 4 if r2 else 4*PER + 16)
    bars = {}
    PVF = [(k + (1 if r2 else 4))*PER + 16 for k in range(3)] + [ 10*PER + 16, 11*PER + 16, NF]
    if ld:
        for k in range(4): S7.place('val', ('g', txt(f"v_accvgpr_read_b32 v{12+k}, a{244+k}")), 4, 80, 100)
        for b in range(6): S7.put('post', ('g', txt(f"v_mfma_f32_16x16x4_f32 {ar(A_LS+4*b,4)}, a{A_ONE}, v{LREG[b]}, 0")), 0, PVF[b] - red)
        S7.place('val', ('g', txt(f"v_mov_b32 v{V_G}, 0")), 4, PVF[0] + 1, PVF[0] + 5); assert fchk > PVF[0] + 5
        S7.place('val', ('g', txt(f"v_accvgpr_read_b32 v{V_OA}, a249")), 4, PVF[1] + 1, PVF[1] + 40)
    for b in range(6):
        pv0 = PVF[b] + o2 - 2
        S7.put('mem', ('g', mkg(x_wl, b)), 4, pv0 + 4)
        w = pv0 + 5
        ws_ = wsend if b < 3 else wstep7 if b < 4 else 2
        for h in range(2 if xb else 0):
            q = oreg(b, 4 + 2*h); w = max(w, pv0 + 8 + 4*h)
            for k in range(4): w = S7.place('val', ('g', txt(f"v_cvt_pk_bf16_f32 v{q+k}, v{q+2*k}, v{q+2*k+1}")), 4, w, w + 2, capx)
            w = S7.place('mem', ('g', mkg(x_w, b, h)), 4, w + 1, w + 2, capx)
        for j in range(0 if xb else 4): w = S7.place('mem', ('g', mkg(x_w, b, j)), 4, max(w, pv0 + ws_*j + 6), max(w, pv0 + ws_*j + 6) + (1 if b < 5 else 0), cap7)
        bars[b] = w + bar7
    def barrier(g, b):
        if r2 and b == 2: g.waitvm([(kv, 7, q) for kv in 'KV' for q in range(2)])
        g.waitlg([('XW', b)]); g.e("s_barrier")
    for b in range(6):
        S7.put('post', ('g', mkg(barrier, b)), 8, bars[b])
        if b == 5: break
        r = S7.place('mem', ('g', mkg(x_rl, b)), 4, bars[b] + 1, bars[b] + 1, cap7)
        for j in range(NX): r = S7.place('mem', ('g', mkg(x_r, b, j)), 4, r + rstep7, r + rstep7, cap7)
    late = []
    for j in range(3):
        if rx[j] >= S7.n: late.append(j); continue
        r = rx[j]
        for k in range(NH[j]): r = S7.place('mem', ('g', mkg(h_ld, j, k)), 8, r, r + 2, cap7) + 1
    hs = [hs0 - hstep]
    rest = []; cur = [0]
    def sched(fn, b, lo):
        c = max(cur[0], lo); items = fn(b, False); prevc = None
        for n, (c_, cost_, g) in enumerate(items):
            order = {'mem': 0, 'val': 1, 'post': 2}
            if c_ in ('mf', 'gap'):
                c += mstep if c_ == 'mf' else cost_
                if c >= S7.n: rest.extend(x[2] for x in items[n:]); break
                if c_ == 'mf': S7.put('post', ('g', g), 0, c); prevc = 'post'
                continue
            if fn is combine and b < 3 and c_ == 'mem':
                lo_ = max(c + 1, hs[-1] + hstep); hs.append(S7.place('mem', ('g', g), 8, lo_, lo_ + 3, cap7)); continue
            if prevc is not None and order[c_] < order[prevc]: c += 1
            while c < S7.n and S7.occ[c] + cost_ > (caps if caps and b < 3 else cap7): c += 1
            if c >= S7.n: rest.extend(x[2] for x in (items[n:] if n else fn(b, True))); break
            S7.put(c_, ('g', g), cost_, c); prevc = c_
        cur[0] = c + 1
        if verbose: print(fn.__name__, b, "ends at slot", c)
    def flagchk(b, pk):
        out = []; add = mkadd(out)
        add('post', 4, waitv=('F',))
        for t_ in fl_chk: add('val', 4, t_)
        add('post', 8, "s_cbranch_vccnz L_spinf\nL_spinf_ret:")
        return out
    sched(flagchk, 0, fchk); rend = [0]*6; assert cur[0] <= min(rx)
    if r2: cur[0] = 0
    for j in range(3):
        if early[j]:
            c0 = cur[0]; sched(recv1, 3+j, early[j]); rend[3+j] = cur[0] + 2; assert cur[0] <= (S7.n if mrx else PVF[3+j] + 9) and (j == 2 or cur[0] - 4*mstep <= early[j+1]) and early[j] > rx[j] + 6 and (mrx or early[j] >= (8+j)*PER + 3); cur[0] = c0
    for b in range(5):
        sched(combine, b, max(bars[b] + 1 + rdw7, PVF[b] + 12 + o2, 0 if xb else rend[b]))
        if b < 3: assert cur[0] <= rx[b]
        if b >= 3: sched(receive, b, max(rx[b-3] + hold[b-3], rend[b]))
    assert not r2 or early[0] > hs[-1]
    t7 = G(); render(t7, S7, mff, 6)
    if verbose: print("occ7", S7.occ, "rest", len(rest), "bars", bars, "hs", hs)
    TL(t7, 7 + len(tlf))
    x_rl(t7, 5)
    for j in range(NX): x_r(t7, 5, j)
    for j in late:
        for k in range(NH[j]): h_ld(t7, j, k)
    for g in rest: t7.ext(g)
    if not rest: t7.e("s_nop 4")
    for c_, cost_, g in combine(5, True) + receive(5, True): t7.ext(g)
    if 'h' in x7: t7.L = [x for x in t7.L if not (x[0].startswith('buffer_store') and 's[8:11]' in x[0])]
    if 'd' in x7: t7.L = [x for x in t7.L if not x[0].startswith('buffer_store_dword ')]
    if 'n' in x7: t7.L = [(x[0] + ' nt' if x[0].startswith('buffer_store') and 's[8:11]' in x[0] else x[0], x[1]) for x in t7.L]
    if 'u' in x7: t7.L = [(x[0].replace(f"v{V_OA}, s[20:23]", f"v{V_H16}, s[20:23]").replace("offset:64 ", "offset:1024 ").replace("s_mov_b32 s51,", "s_add_u32 s51, s60,"), x[1]) for x in t7.L]
    if 'o' in x7: t7.L = [x for x in t7.L if not (x[0].startswith('buffer_store') and 's[20:23]' in x[0])]
    if 'l' in x7: t7.L = [x for x in t7.L if not ('H' in x[1].get('vm', ()) or 'H' in x[1].get('waitvm', ()))]
    if 'w' in x7: t7.L = [x for x in t7.L if not ('H' in x[1].get('waitvm', ()))]
    if 'f' in x7: t7.L = [x for x in t7.L if not ('F' in x[1].get('vm', ()) or 'F' in x[1].get('waitvm', ()) or 'nz L_spinf' in x[0])]
    t7.raw(f"""
s_mov_b32 s51, 0x{f2u(thresh if not force_fb else 0.0):08x}
v_cmp_nge_f32 vcc, s51, v{V_G}
{'' if skip else 's_cbranch_vccnz L_fallback'}
L_fin:
""")
    TL(t7, 8 + len(tlf))
    if stamps:
        t7.e("s_waitcnt vmcnt(0)")
        TL(t7, 9 + len(tlf))
        if cnt: t7.raw(f"s_add_u32 s88, s84, s{S_CNT}\ns_addc_u32 s89, s85, 0")
        t7.raw(stamp_end(4, 2, S_W))
        if tline: t7.raw(tl_store(0, 2))
    if probe is not None:
        t7.e("s_waitcnt vmcnt(0)"); TL(t7, 99); t7.raw(probe_end('base' if probe == 'base' else 'pro'))
    t7.e("L_end:")
    t7.e("s_endpgm")
    ol = G()
    ol.raw(f"""
L_flag:
{'buffer_store_byte' if fbyte else 'buffer_atomic_or'} v{V_X}, v{V_X+1}, s[{S_D}:{S_D+3}], 0 offen {hflag if fbyte else 'sc1'}
s_branch L_flag_ret
""")
    if clrit >= 0: ol.raw('L_clr:\n' + '\n'.join(clears) + '\ns_branch L_clr_ret')
    for nm, lds_, chk in [('f', [fl_ld], fl_chk)] + [(str(j), [mkg(h_ld, j, k).L[0][0] for k in range(NH[j])], h_chk(j)) for j in range(3)]:
        ol.e(f"L_spin{nm}:")
        for t_ in lds_: ol.e(t_)
        ol.e(f"s_add_u32 s{S_CNT}, s{S_CNT}, 1")
        ol.e("s_waitcnt vmcnt(0)")
        for t_ in chk: ol.e(t_)
        ol.raw(f"""
s_cbranch_vccz L_spin{nm}_ret
s_cmp_lt_u32 s{S_CNT}, {spin}
s_cbranch_scc1 L_spin{nm}
v_mov_b32 v{V_G}, 0x7f800000
s_branch L_spin{nm}_ret
""")
    fb = G()
    M = V_P + 8
    fb.raw(f"""
L_fallback:
s_waitcnt vmcnt(0) lgkmcnt(0)
s_lshl_b32 s51, s50, 14
s_add_u32 s48, s48, s51
s_lshl_b32 s51, s49, 7
s_add_u32 s{S_K}, s6, s{S_GRP}
s_addc_u32 s{S_K+1}, s7, 0
s_add_u32 s{S_V}, s40, s{S_GRP}
s_addc_u32 s{S_V+1}, s41, 0
s_mov_b32 s{S_K+2}, 0x80000
s_mov_b32 s{S_V+2}, 0x80000
""")
    addr_dma(fb, 48); addr_v(fb, 48, 51)
    for q in range(4): fb.e(f"s_add_u32 s{S_M00+q}, s48, {q*4096}")
    for b in range(3): fb.e(f"v_mov_b32 v{M+b}, 0xff800000")
    for r in range(4 if ld else 0): fb.e(f"v_accvgpr_write_b32 a{A_ONE+r}, s91")
    def fb_init():
        for q in range(4): fb.e(f"s_mov_b32 s{S_OFF+q}, {q*4096}")
        fb.e(f"s_mov_b32 s{S_IT}, 0")
    def fb_load(kv):
        for q in range(4):
            m0(fb, S_M00 + q); fb.e("s_nop 0")
            for j in range(4): dma(fb, kv, 0, q, j, S_OFF)
        fb.e("s_waitcnt vmcnt(0)")
        if kv == 'K':
            for f in range(16): rd_k(fb, 0, f)
        else:
            for x in range(16, 32): rd_v(fb, 0, x)
        fb.e("s_waitcnt lgkmcnt(0)")
    def fb_next(lbl):
        for q in range(4): fb.e(f"s_add_u32 s{S_OFF+q}, s{S_OFF+q}, 16384")
        salu(fb, 4)
        fb.e(f"s_cmp_lt_u32 s{S_IT}, 32")
        fb.e(f"s_cbranch_scc1 {lbl}")
    fb_init()
    fb.e("L_fb1:")
    fb_load('K')
    for b in range(3):
        for f in range(16): mf_qk(fb, 3+b, f)
        fb.e("s_nop 9")
        for i in range(0, 16, 2): fb.e(f"v_max3_f32 v{M+b}, v{V_S+i}, v{V_S+i+1}, v{M+b}")
    fb_next("L_fb1")
    for b in range(3):
        for sw in (32, 16):
            fb.raw(f"v_mov_b32 v{T}, v{M+b}\ns_nop 1\nv_permlane{sw}_swap_b32 v{T}, v{M+b}\ns_nop 1\nv_max_f32 v{M+b}, v{T}, v{M+b}")
        for r in range(16): fb.e(f"v_mov_b32 v{oreg(3+b,0)+r}, 0")
        for r in range(4): fb.e(f"v_accvgpr_write_b32 a{A_LS+12+4*b+r}, 0")
    fb_init()
    fb.e("L_fb2:")
    fb_load('K'); fb_load('V')
    for b in range(3):
        for f in range(16): mf_qk(fb, 3+b, f)
        fb.e("s_nop 9")
        for i in range(16): fb.e(f"v_sub_f32 v{V_S+i}, v{V_S+i}, v{M+b}")
        for i in range(16): sm_exp(fb, i)
        fb.e("s_nop 0")
        for k in range(8): sm_cvt(fb, V_P, k)
        fb.e("s_nop 1")
        for s in [0, 1] + list(range(10, 18)): mf_pv(fb, 3+b, s, V_P, o2=2)
    fb_next("L_fb2")
    fb.e("s_nop 9")
    for b in range(3, 6):
        fb.raw(f"v_accvgpr_read_b32 v{V_R}, a{A_LS+4*b}\ns_nop 0\nv_rcp_f32 v{V_R}, v{V_R}\ns_nop 0")
        out = []; finish_out(mkadd(out), b, False, V_R)
        for c_, cost_, g in out: fb.ext(g)
    fb.e("s_branch L_fin")
    return dict(p=p, t0=t0, tile=tile, t7=t7, ol=ol, fb=fb, verbose=verbose, skip=skip, align=align, nx=NX + 1, r2=r2, pg=pg)

def tagvm(Lst): return [(t, ({**m, 'vm': ('other',)} if t.startswith('buffer_') and 'vm' not in m else m)) for t, m in Lst]
def xcheck(seg, lines, nx, r2):
    NW = {'K': 8, 'V': 8, 'Q': 6, 'X': nx}; NR = {'K': 16, 'V': 32, 'Q': 12, 'X': nx}
    vm, lg, nw, nr, pub, rel = [], [], {}, {}, set(), set()
    for (t0, m), t in zip(seg, lines):
        if t.startswith('s_waitcnt'):
            a = re.search(r'vmcnt\((\d+)\)', t); b = re.search(r'lgkmcnt\((\d+)\)', t)
            if a: n = int(a.group(1)); vm = vm[max(0, len(vm)-n):] if n else []
            if b: n = int(b.group(1)); lg = lg[max(0, len(lg)-n):] if n else []
        if t.startswith('s_barrier'):
            pub |= {k for k, c in nw.items() if c == NW[k[0]] and ('w', k) not in vm + lg}
            rel |= {k for k, c in nr.items() if c == NR[k[0]] and ('r', k) not in lg}
        e = None
        if 'xr' in m:
            k = m['xr']; assert k in pub or (not r2 and k[1] == 8 and (k[0], 6) in pub), ('read before publish', t, k); nr[k] = nr.get(k, 0) + 1; e = ('r', k)
        if 'xw' in m:
            k = m['xw']; nw[k] = nw.get(k, 0) + 1; e = ('w', k)
            need = []
            if k[0] in 'KV' and k[1] >= 2: need = [(k[0], k[1]-2)]
            if k == ('V', 1): need = [('Q', 0)]
            if k[0] == 'X': need = ([] if r2 else [('K', 7)]) + [('Q', 0), ('Q', 1)] + ([('X', k[1]-2)] if k[1] >= 2 else [])
            assert all(x in rel for x in need), ('write before release', t, k)
        if t.startswith('buffer_'): vm.append(e)
        if t.startswith('ds_'): lg.append(e)
    assert ('K', 8) in rel and ('V', 8) in rel
def finish(d):
    p, t0, t7, fb, ol = [tagvm(d[k].L) for k in ('p', 't0', 't7', 'fb', 'ol')]
    bodies = [tagvm(d['tile'](t).L) for t in range(1, 6)]
    head = p + t0
    trace = head + sum(bodies, []) + t7
    res = resolve(trace)
    nb = len(bodies[0]); n0 = len(head)
    rb = []
    for k in range(nb):
        c = [res[n0 + it*nb + k] for it in range(5)]
        rb.append(None if c[0] is None else (c[0][0], min(x[1] for x in c)))
        if c[0] is not None and len(set(c[1:])) != 1: print("wait differs", c)
    out_pre = emit(head, res[:n0]); out_body = emit(bodies[0], rb); out_tail = emit(t7, res[n0 + 5*nb:])
    out_fb = emit(fb, resolve(fb)); out_ol = [t for t, m in ol]
    sk = d['skip']
    assert [l for l in out_body if l.startswith(('s_add', 's_xor', 's_cmp', 's_and'))][-1].startswith('s_cmp_lt_u32')
    kw_ = max(k for k, l in enumerate(out_body) if 'vmcnt' in l)
    assert int(re.search(r'vmcnt\((\d+)\)', out_body[kw_]).group(1)) <= sum(l.startswith('buffer_') for l in out_body[:kw_]) and out_body[kw_+1] == 's_barrier' and 'L_flag_ret:' in out_body[kw_:]
    nbad = 0 if sk else readiness(head + bodies[0] + bodies[1] + t7, out_pre + out_body + out_body + out_tail, 'main')
    nbad += readiness(fb, out_fb, 'fb') + readiness(ol, out_ol, 'ol')
    xcheck(trace, out_pre + out_body*5 + out_tail, d['nx'], d['r2'])
    if d['verbose']:
        print("predicted cycles tile0/loop/tile7", predict(out_pre), predict(out_body), predict(out_tail)); print([l for l in out_body if 'waitcnt' in l])
    if 'd' in sk: out_body = [l for l in out_body if not l.startswith('buffer_load')]
    if 'L' in sk: out_pre = [l for l in out_pre if not l.startswith('buffer_load')]
    if 'K' in sk: out_pre = [l for l in out_pre if not (l.startswith('buffer_load') and l.endswith('lds'))]
    if 'Q' in sk: out_pre = [l for l in out_pre if not (l.startswith('buffer_load') and not l.endswith('lds'))]
    if 'C' in sk: out_body = [l for l in out_body if not l.startswith('buffer_store')]
    if 'b' in sk: out_body = [l for l in out_body if not l.startswith('s_barrier')]
    if not sk: nbad += hazard.check(out_pre + out_body + out_body + out_tail + out_ol + out_fb, 'main', timed=True)
    assert nbad == 0 or sk
    lines = out_pre + ([f".p2align {d['align']}"] if d['align'] else []) + ["L_loop:"] + out_body + out_tail + out_ol + out_fb
    if d['pg']:
        def sizes(ls):
            r = subprocess.run(["llvm-mc", "-triple=amdgcn-amd-amdhsa", "-mcpu=gfx950", "-show-encoding"], input="\n".join(ls), capture_output=True, text=True)
            e = [l.split('encoding: [')[1].count(',') + 1 for l in r.stdout.split("\n") if 'encoding: [' in l]
            assert len(e) == sum(map(isin, ls)), r.stderr[:300]
            it = iter(e); return [next(it) if isin(l) else 0 for l in ls]
        isin = lambda l: not (l.endswith(':') or l.startswith('.') or not l.strip())
        assert out_ol[0] == 'L_flag:'
        pre_ = out_pre + ['s_branch L_pg2'] + out_ol[:3]; hot = ["L_loop:"] + out_body + out_tail
        sz = sizes(pre_ + hot + out_ol[3:] + out_fb + ['L_pg1:', 'L_pg2:', 'L_pg3:', 'L_pg4:'])
        touch = lambda k: [f"L_pg{k}:"] + (["s_cbranch_execz L_back"] if d['pg'] == 2 else [])
        k = max(k for k in range(len(pre_)) if sum(sz[:k]) <= 3068 and 'waitcnt' in pre_[k]); assert sum(sz[k:len(pre_)]) <= 4092
        assert sum(sz[:k]) <= 3068
        lines = pre_[:k] + ['s_branch L_pg1', '.p2align 12'] + touch(1) + pre_[k:] + ['.p2align 12'] + touch(2)
        a = 4; n = 3
        for l, z in zip(hot, sz[len(pre_):]):
            if a >= (n - 2)*4096 and n < 5 and z: lines += touch(n); n += 1; a += 4
            lines.append(l); a += z
        assert n == 5
        if d['verbose']: print("pages: split", sum(sz[:k]), sum(sz[k:len(pre_)]), "hot", a)
        lines += out_ol[3:] + out_fb
    txt = "\n".join(l if l.endswith(':') or l.startswith('.') else "    " + l for l in lines)
    return wrap(txt, 256, 256, 163840, nsgpr=96)
def make(**kw): return finish(gen(**kw))

if __name__ == "__main__":
    print(build(make(verbose=True, nq1=3, pre='q012 k0', mid='k1', post='q345', step0=5, spread=(65,85,150), fit=4, dot=True), "h2"))
```

```python
from gen_h2 import *
k0 = dict(spread=(73,87,150), fit=4, dot=True, fodd=3, kmrg=True, pf=3, pfat=1, lag0=4, pg=2, vrd0=6, vat=(0,3), vatf=(0,3), kvf='nt')
q = dict(nq1=3, pre='q012 k0', mid='k1 q345', post='v0', step0=5, lag0=5)
build(make(**k0), "w0")
build(make(**{**k0, **q}), "w1")
build(make(**{**k0, **q, 'pfat':-1}), "w2")
build(make(**{**k0, **q, 'pg':0}), "w3")
build(make(**{**k0, **q, 'pg':1}), "w4")
```
